```python
import torch

def _softmax(x, axis=-1):
    return torch.softmax(x, dim=axis)
def _gelu(x):
    return torch.nn.functional.gelu(x, approximate="tanh")
def _silu(x):
    return torch.nn.functional.silu(x)
def _sigmoid(x):
    return torch.sigmoid(x)
def _layernorm(x, axis=-1, eps=1e-5):
    m = x.mean(dim=axis, keepdim=True)
    v = x.var(dim=axis, keepdim=True, unbiased=False)
    return (x - m) / torch.sqrt(v + eps)
def _scatter_add(tgt, idx, src, axis=0):
    return tgt.clone().index_add_(axis, idx, src)
def _segment_sum(src, seg, n):
    out = torch.zeros((n,) + src.shape[1:], dtype=src.dtype)
    return out.index_add_(0, seg, src)
def _pad(x, pw):
    flat = tuple(v for pair in reversed(pw) for v in pair)
    return torch.nn.functional.pad(x, flat)

kernel_name = 'gather_scatter__molecular_angular_gemnet__graph'

def setup_inputs():

    _w = (lambda a: (lambda t: t.to(torch.bfloat16) if t.is_floating_point() else t)(torch.as_tensor(a)))
    N, deg, De, L = 10000, 16, 4, 1
    E = N * deg
    T = E * deg
    NR = 8
    dist = torch.rand(E).to(float)
    angle = (torch.rand(T) * torch.pi).to(float)
    centers = torch.linspace(0.0, 1.0, NR).to(float)
    ang_freq = torch.arange(1, L + 1).to(float)
    return {
        "m": _w((lambda *s: torch.randn(*s, dtype=torch.bfloat16) * 0.05)(E, De)),
        "idx_in": _w((lambda lo, hi, *s: torch.randint(lo, hi, s))(0, E, T).to(torch.int64)),
        "idx_out": _w((lambda lo, hi, *s: torch.randint(lo, hi, s))(0, E, T).to(torch.int64)),
        "dist": _w(dist),
        "angle": _w(angle),
        "centers": _w(centers),
        "ang_freq": _w(ang_freq),
        "w_rbf": _w((lambda *s: torch.randn(*s, dtype=torch.bfloat16) * 0.4)(NR, De)),
        "w_sbf": _w((lambda *s: torch.randn(*s, dtype=torch.bfloat16) * 0.4)(NR * L, De)),
        "w_down": _w((lambda *s: torch.randn(*s, dtype=torch.bfloat16) * 0.4)(De, De)),
        "w_up": _w((lambda *s: torch.randn(*s, dtype=torch.bfloat16) * 0.4)(De, De)),
    }

def reference(m, idx_in, idx_out, dist, angle, centers, ang_freq, w_rbf, w_sbf, w_down, w_up):
    E, De = m.shape[0], m.shape[1]
    NR = centers.shape[0]
    L = ang_freq.shape[0]
    rbf = torch.exp(-10.0 * (dist[:, None] - centers[None, :]) ** 2)
    cbf = torch.cos(ang_freq[None, :] * angle[:, None])
    rbf_t = rbf[idx_out]
    sbf = torch.reshape(rbf_t[:, :, None] * cbf[:, None, :], (-1, NR * L))
    x = (m[idx_in] @ w_down) * (sbf @ w_sbf)
    agg = _segment_sum(x, idx_out, E)
    return m + (agg @ w_up) * (rbf @ w_rbf)
```

```python
import sys

NAME = "gather_scatter__molecular_angular_gemnet__graph"
NWG = 250
CH = 10240
BINW = 640
WS_A = 0
WS_C = NWG * CH * 4
WS_T = WS_C + NWG * CH * 2
WS_SIZE = 268435456

out = []
def e(s=""):
    out.append(s)

opts = dict(st="sc1", ldnt="nt")
for a in sys.argv[2:]:
    k, v = a.split("=")
    opts[k] = v
ST = "" if opts["st"] == "plain" else " " + opts["st"].replace("+", " ")
LDNT = "" if opts["ldnt"] == "plain" else " " + opts["ldnt"]

header = open("cdna_kernels/%s.s.ref" % NAME).read().split("\n")
for line in header:
    if line.startswith("; Override launch") or line.startswith("; grid=ceil") or "@launch" in line:
        continue
    if line.startswith(";"):
        e(line)
    else:
        break
P1_LDS = 2048 + CH * 4 + CH * 2
P2_LDS = 4 * BINW * 8
e("; Two launches: bin the triplets by destination range, then accumulate per range.")
e("; @launch kernel=%s_kernel grid=(%d,1,1) block=(1024,1,1) lds=%d" % (NAME, NWG, P1_LDS))
e("; @launch kernel=gs_acc_kernel grid=(%d,1,1) block=(1024,1,1) lds=%d" % (NWG, P2_LDS))
e('.amdgcn_target "amdgcn-amd-amdhsa--gfx950"')
e(".text")

CNT, OFF, PA = 0, 1024, 2048
PC = PA + CH * 4
K1 = NAME + "_kernel"
e(".globl %s" % K1)
e(".p2align 8")
e(".type %s,@function" % K1)
e("%s:" % K1)
e("  s_cmp_ge_u32 s2, %d" % NWG)
e("  s_cbranch_scc1 L_p1_end")
e("  s_load_dwordx2 s[4:5], s[0:1], 8")
e("  s_load_dwordx2 s[8:9], s[0:1], 16")
e("  s_load_dwordx2 s[12:13], s[0:1], 32")
e("  s_load_dwordx2 s[30:31], s[0:1], 48")
e("  s_load_dwordx2 s[16:17], s[0:1], 104")
e("  v_lshlrev_b32 v1, 4, v0")
e("  v_lshlrev_b32 v2, 3, v0")
e("  v_lshlrev_b32 v3, 2, v0")
e("  v_mov_b32 v90, 1")
e("  v_mov_b32 v70, 0")
e("  s_mul_i32 s20, s2, %d" % (CH * 4))
e("  s_add_u32 s21, s20, 16384")
e("  s_add_u32 s22, s20, 32768")
e("  s_mul_i32 s23, s2, %d" % (CH * 2))
e("  s_add_u32 s24, s23, 8192")
e("  s_add_u32 s25, s23, 16384")
e("  s_mov_b32 s6, %d" % (NWG * CH * 4))
e("  s_mov_b32 s7, 0x20000")
e("  s_mov_b32 s10, %d" % (NWG * CH * 4))
e("  s_mov_b32 s11, 0x20000")
e("  s_mov_b32 s14, %d" % (NWG * CH * 2))
e("  s_mov_b32 s15, 0x20000")
e("  s_mov_b32 s18, %d" % WS_SIZE)
e("  s_mov_b32 s19, 0x20000")
e("  s_mov_b32 s27, %d" % (-BINW & 0xFFFFFFFF))
e("  s_mov_b32 s28, 0x3e22f900")
e("  s_mov_b32 s29, 0x36036e4e")
e("  v_cmp_gt_u32 vcc, 0x100, v0")
e("  s_and_saveexec_b64 s[32:33], vcc")
e("  ds_write_b32 v3, v70 offset:%d" % CNT)
e("  s_mov_b64 exec, s[32:33]")
e("  s_waitcnt lgkmcnt(0)")
O = [4 + j for j in range(10)]
I = [14 + j for j in range(10)]
N = [24 + j for j in range(5)]
H = [30 + j for j in range(10)]
D = [40 + j for j in range(10)]
R = [50 + j for j in range(10)]
F = [60 + j for j in range(10)]
e("  buffer_load_dwordx4 v[4:7], v1, s[8:11], s20 offen" + LDNT)
e("  buffer_load_dwordx4 v[8:11], v1, s[8:11], s21 offen" + LDNT)
e("  buffer_load_dwordx2 v[12:13], v2, s[8:11], s22 offen" + LDNT)
e("  buffer_load_dwordx4 v[14:17], v1, s[4:7], s20 offen" + LDNT)
e("  buffer_load_dwordx2 v[24:25], v2, s[12:15], s23 offen" + LDNT)
e("  buffer_load_dwordx4 v[18:21], v1, s[4:7], s21 offen" + LDNT)
e("  buffer_load_dwordx2 v[26:27], v2, s[12:15], s24 offen" + LDNT)
e("  buffer_load_dwordx2 v[22:23], v2, s[4:7], s22 offen" + LDNT)
e("  buffer_load_dword v28, v3, s[12:15], s25 offen" + LDNT)
e("  s_load_dword s26, s[30:31], 0")
e("  s_waitcnt lgkmcnt(0)")
e("  s_lshl_b32 s26, s26, 16")
e("  s_barrier")

def hist(js):
    for j in js:
        e("  v_lshrrev_b32 v%d, 7, v%d" % (F[j], O[j]))
    for j in js:
        e("  v_mul_u32_u24 v%d, 0xcccd, v%d" % (F[j], F[j]))
    for j in js:
        e("  v_lshrrev_b32 v%d, 18, v%d" % (F[j], F[j]))
    for j in js:
        e("  v_lshlrev_b32 v%d, 2, v%d" % (H[j], F[j]))
    for j in js:
        e("  ds_add_rtn_u32 v%d, v%d, v90 offset:%d" % (R[j], H[j], CNT))
    for j in js:
        e("  v_mad_i32_i24 v%d, v%d, s27, v%d" % (D[j], F[j], O[j]))

e("  s_waitcnt vmcnt(8)")
hist([0, 1, 2, 3])
e("  s_waitcnt vmcnt(7)")
hist([4, 5, 6, 7])
e("  s_waitcnt vmcnt(6)")
hist([8, 9])
e("  s_waitcnt lgkmcnt(0)")
e("  s_barrier")
e("  v_and_b32 v71, 63, v0")
e("  v_lshlrev_b32 v72, 4, v71")
e("  ds_read_b128 v[74:77], v72 offset:%d" % CNT)
e("  s_waitcnt lgkmcnt(0)")
e("  v_add_u32 v79, v74, v75")
e("  v_add_u32 v80, v79, v76")
e("  v_add_u32 v81, v80, v77")
e("  v_mov_b32 v82, v81")
for sh in (1, 2, 4, 8):
    e("  s_nop 1")
    e("  v_add_u32_dpp v82, v82, v82 row_shr:%d row_mask:0xf bank_mask:0xf bound_ctrl:0" % sh)
e("  s_nop 1")
e("  v_add_u32_dpp v82, v82, v82 row_bcast:15 row_mask:0xa bank_mask:0xf")
e("  s_nop 1")
e("  v_add_u32_dpp v82, v82, v82 row_bcast:31 row_mask:0xc bank_mask:0xf")
e("  v_sub_u32 v84, v82, v81")
e("  v_add_u32 v85, v84, v74")
e("  v_add_u32 v86, v84, v79")
e("  v_add_u32 v87, v84, v80")
e("  ds_write_b128 v72, v[84:87] offset:%d" % OFF)
e("  s_waitcnt lgkmcnt(0)")
for j in range(10):
    e("  ds_read_b32 v%d, v%d offset:%d" % (F[j], H[j], OFF))
for k in range(4):
    e("  v_lshl_or_b32 v%d, v%d, 16, v%d" % (74 + k, 74 + k, 84 + k))
e("  s_waitcnt lgkmcnt(0)")
for j in range(10):
    e("  v_add_u32 v%d, v%d, v%d" % (R[j], R[j], F[j]))

def place(js, nregs):
    for j in js:
        e("  v_lshlrev_b32 v%d, 3, v%d" % (I[j], I[j]))
    for j in js:
        e("  v_lshl_or_b32 v%d, v%d, 21, v%d" % (I[j], D[j], I[j]))
    for j in js:
        e("  v_lshlrev_b32 v%d, 2, v%d" % (H[j], R[j]))
    for j in js:
        e("  ds_write_b32 v%d, v%d offset:%d" % (H[j], I[j], PA))
    np_ = len(nregs)
    X0 = [F[js[2 * p]] for p in range(np_)]
    X1 = [F[js[2 * p + 1]] for p in range(np_)]
    Q0 = [O[js[2 * p]] for p in range(np_)]
    Q1 = [O[js[2 * p + 1]] for p in range(np_)]
    for p in range(np_):
        e("  v_lshlrev_b32 v%d, 16, v%d" % (X0[p], nregs[p]))
        e("  v_and_b32 v%d, 0xffff0000, v%d" % (X1[p], nregs[p]))
    for p in range(np_):
        e("  v_mul_f32 v%d, s26, v%d" % (X0[p], X0[p]))
        e("  v_mul_f32 v%d, s26, v%d" % (X1[p], X1[p]))
    for p in range(np_):
        e("  v_cvt_pk_bf16_f32 v%d, v%d, v%d" % (nregs[p], X0[p], X1[p]))
    for p in range(np_):
        e("  v_lshlrev_b32 v%d, 16, v%d" % (X0[p], nregs[p]))
        e("  v_and_b32 v%d, 0xffff0000, v%d" % (X1[p], nregs[p]))
    for p in range(np_):
        e("  v_mul_f32 v%d, s28, v%d" % (Q0[p], X0[p]))
        e("  v_mul_f32 v%d, s28, v%d" % (Q1[p], X1[p]))
    for p in range(np_):
        e("  v_fract_f32 v%d, v%d" % (Q0[p], Q0[p]))
        e("  v_fract_f32 v%d, v%d" % (Q1[p], Q1[p]))
    for p in range(np_):
        e("  v_fma_f32 v%d, v%d, s29, v%d" % (Q0[p], X0[p], Q0[p]))
        e("  v_fma_f32 v%d, v%d, s29, v%d" % (Q1[p], X1[p], Q1[p]))
    for p in range(np_):
        e("  v_cos_f32 v%d, v%d" % (Q0[p], Q0[p]))
        e("  v_cos_f32 v%d, v%d" % (Q1[p], Q1[p]))
    for j in js:
        e("  v_lshlrev_b32 v%d, 1, v%d" % (H[j], R[j]))
    for p in range(np_):
        e("  v_cvt_pk_bf16_f32 v%d, v%d, v%d" % (nregs[p], Q0[p], Q1[p]))
    for p in range(np_):
        e("  ds_write_b16 v%d, v%d offset:%d" % (H[js[2 * p]], nregs[p], PC))
        e("  ds_write_b16_d16_hi v%d, v%d offset:%d" % (H[js[2 * p + 1]], nregs[p], PC))

e("  s_waitcnt vmcnt(4)")
place([0, 1, 2, 3], [24, 25])
e("  s_waitcnt vmcnt(2)")
place([4, 5, 6, 7], [26, 27])
e("  s_waitcnt vmcnt(0)")
place([8, 9], [28])
e("  v_lshrrev_b32 v91, 6, v0")
e("  s_waitcnt lgkmcnt(0)")
e("  v_readfirstlane_b32 s34, v91")
e("  s_barrier")
e("  ds_read_b128 v[4:7], v1 offset:%d" % PA)
e("  ds_read_b128 v[8:11], v1 offset:%d" % (PA + 16384))
e("  ds_read_b128 v[12:15], v1 offset:%d" % (PA + 32768))
e("  ds_read_b128 v[16:19], v1 offset:%d" % (PA + 49152))
e("  s_add_u32 s35, s20, %d" % WS_A)
e("  s_add_u32 s36, s21, %d" % WS_A)
e("  s_add_u32 s37, s22, %d" % WS_A)
e("  s_add_u32 s38, s23, %d" % (WS_C - 8192))
e("  s_cmp_lt_u32 s34, 8")
e("  s_cselect_b32 s37, s37, s38")
e("  s_add_u32 s38, s23, %d" % (WS_C + 8192))
e("  s_waitcnt lgkmcnt(3)")
e("  buffer_store_dwordx4 v[4:7], v1, s[16:19], s35 offen" + ST)
e("  s_waitcnt lgkmcnt(2)")
e("  buffer_store_dwordx4 v[8:11], v1, s[16:19], s36 offen" + ST)
e("  s_waitcnt lgkmcnt(1)")
e("  buffer_store_dwordx4 v[12:15], v1, s[16:19], s37 offen" + ST)
e("  s_waitcnt lgkmcnt(0)")
e("  s_cmp_ge_u32 s34, 12")
e("  s_cbranch_scc1 L_p1_end")
e("  buffer_store_dwordx4 v[16:19], v1, s[16:19], s38 offen" + ST)
e("  s_cmp_ge_u32 s34, 4")
e("  s_cbranch_scc1 L_p1_end")
e("  s_lshl_b32 s39, s34, 10")
e("  s_lshl_b32 s40, s2, 2")
e("  s_add_u32 s39, s39, s40")
e("  s_add_u32 s39, s39, %d" % WS_T)
e("  v_lshlrev_b32 v72, 12, v71")
e("  s_cmp_eq_u32 s34, 0")
e("  s_cbranch_scc1 L_p1_t0")
e("  s_cmp_eq_u32 s34, 1")
e("  s_cbranch_scc1 L_p1_t1")
e("  s_cmp_eq_u32 s34, 2")
e("  s_cbranch_scc1 L_p1_t2")
e("  buffer_store_dword v77, v72, s[16:19], s39 offen" + ST)
e("  s_endpgm")
e("L_p1_t0:")
e("  buffer_store_dword v74, v72, s[16:19], s39 offen" + ST)
e("  s_endpgm")
e("L_p1_t1:")
e("  buffer_store_dword v75, v72, s[16:19], s39 offen" + ST)
e("  s_endpgm")
e("L_p1_t2:")
e("  buffer_store_dword v76, v72, s[16:19], s39 offen" + ST)
e("L_p1_end:")
e("  s_endpgm")

K2 = "gs_acc_kernel"
e(".globl %s" % K2)
e(".p2align 8")
e(".type %s,@function" % K2)
e("%s:" % K2)
e("  s_cmp_ge_u32 s2, %d" % NWG)
e("  s_cbranch_scc1 L_p2_end")
e("  s_load_dwordx2 s[4:5], s[0:1], 0")
e("  s_load_dwordx2 s[8:9], s[0:1], 24")
e("  s_load_dwordx2 s[12:13], s[0:1], 104")
e("  s_load_dwordx2 s[16:17], s[0:1], 88")
e("  s_load_dwordx4 s[20:23], s[0:1], 56")
e("  s_load_dwordx4 s[24:27], s[0:1], 72")
e("  s_load_dwordx2 s[28:29], s[0:1], 40")
VL, VU, VT, VN, VDONE = 1, 2, 3, 4, 5
e("  v_and_b32 v1, 63, v0")
e("  v_lshrrev_b32 v6, 6, v0")
e("  s_mov_b32 s6, 1280000")
e("  s_mov_b32 s7, 0x20000")
e("  s_mov_b32 s10, 320000")
e("  s_mov_b32 s11, 0x20000")
e("  s_mov_b32 s14, %d" % WS_SIZE)
e("  s_mov_b32 s15, 0x20000")
e("  s_mov_b32 s18, 1280000")
e("  s_mov_b32 s19, 0x20000")
e("  v_readfirstlane_b32 s30, v6")
e("  s_mul_i32 s31, s2, %d" % BINW)
e("  s_lshl_b32 s32, s2, 10")
e("  s_add_u32 s32, s32, %d" % WS_T)
e("  s_mov_b32 s33, %d" % WS_C)
e("  v_mov_b32 v8, 0")
e("  v_mov_b32 v9, 0")
e("  v_mov_b32 v10, 0")
e("  v_mov_b32 v11, 0")
e("  v_lshlrev_b32 v7, 4, v0")
e("  ds_write_b128 v7, v[8:11]")
e("  v_cmp_gt_u32 vcc, 0x100, v0")
e("  s_and_saveexec_b64 s[34:35], vcc")
e("  ds_write_b128 v7, v[8:11] offset:16384")
e("  s_mov_b64 exec, s[34:35]")
e("  v_add_u32 v92, s31, v0")
e("  v_lshlrev_b32 v93, 1, v92")
e("  v_lshlrev_b32 v92, 3, v92")
e("  s_lshl_b32 s36, s30, 4")
e("  v_add_u32 v6, s36, v1")
e("  v_lshlrev_b32 v7, 2, v6")
e("  s_waitcnt lgkmcnt(0)")
e("  buffer_load_dword v2, v7, s[12:15], s32 offen")
e("  buffer_load_ushort v94, v93, s[8:11], 0 offen")
e("  buffer_load_dwordx2 v[96:97], v92, s[4:7], 0 offen")
e("  s_waitcnt vmcnt(2)")
e("  v_lshrrev_b32 v4, 16, v2")
e("  v_and_b32 v2, 0xffff, v2")
e("  s_mov_b32 s37, %d" % CH)
e("  v_mad_u32_u24 v2, v6, s37, v2")
e("  v_cmp_gt_u32 vcc, %d, v6" % NWG)
e("  v_cmp_gt_u32 s[38:39], 16, v1")
e("  s_and_b64 vcc, vcc, s[38:39]")
e("  v_cndmask_b32 v4, 0, v4, vcc")
e("  v_cndmask_b32 v2, 0, v2, vcc")
e("  v_min_u32 v5, 64, v4")
e("  v_cmp_lt_u32 vcc, 64, v4")
e("  s_mov_b32 s40, 0")
e("  s_mov_b32 s41, 0")
e("  s_cbranch_vccz L_p2_nolong")
e("  s_ff1_i32_b64 s42, vcc")
e("  v_readlane_b32 s40, v2, s42")
e("  v_readlane_b32 s41, v4, s42")
e("  s_add_u32 s40, s40, 64")
e("  s_sub_u32 s41, s41, 64")
e("  s_min_u32 s41, s41, 64")
e("  s_add_u32 s43, s41, 64")
e("  s_mov_b32 m0, s42")
e("  v_writelane_b32 v5, s43, m0")
e("L_p2_nolong:")
e("  v_min_u32 v3, 64, v4")
e("  v_writelane_b32 v2, s40, 16")
e("  v_writelane_b32 v3, s41, 16")
e("  v_sub_u32 v3, 64, v3")
e("  v_mov_b32 v9, v2")
NP = 17
A = [10 + s for s in range(NP)]
C = [27 + s for s in range(NP)]
G = [44 + 2 * s for s in range(NP)]
ST_ = [44 + s for s in range(NP)]
for s in range(NP):
    e("  v_readlane_b32 s61, v2, %d" % s)
    e("  v_readlane_b32 s%d, v3, %d" % (ST_[s], s))
    e("  s_min_u32 s62, s%d, 63" % ST_[s])
    e("  s_lshr_b64 exec, -1, s62")
    ta, tc = (78, 79) if s % 2 == 0 else (80, 81)
    e("  v_add_lshl_u32 v%d, s61, v1, 2" % ta)
    e("  v_add_lshl_u32 v%d, s61, v1, 1" % tc)
    e("  buffer_load_dword v%d, v%d, s[12:15], 0 offen" % (A[s], ta))
    e("  buffer_load_ushort v%d, v%d, s[12:15], s33 offen" % (C[s], tc))
e("  s_mov_b64 exec, -1")
e("  s_barrier")
for s in range(NP):
    e("  s_waitcnt vmcnt(%d)" % (2 * NP - 1 - s))
    e("  s_min_u32 s62, s%d, 63" % ST_[s])
    e("  s_lshr_b64 exec, -1, s62")
    ta = 78 + (s % 4)
    e("  v_and_b32 v%d, 0x1fffff, v%d" % (ta, A[s]))
    e("  buffer_load_dwordx2 v[%d:%d], v%d, s[4:7], 0 offen" % (G[s], G[s] + 1, ta))
e("  s_mov_b64 exec, -1")
S = [98, 99, 100, 101]
Rr = [102, 103, 104, 105]
e("  s_cmp_ge_u32 s30, 10")
e("  s_cbranch_scc1 L_p2_nopre")
e("  s_load_dwordx4 s[64:67], s[28:29], 0")
e("  s_load_dwordx16 s[68:83], s[22:23], 0")
e("  s_load_dwordx16 s[84:99], s[20:21], 0")
e("  v_lshlrev_b32 v94, 16, v94")
e("  s_mov_b32 s61, 0xc1200000")
e("  s_mov_b32 s62, 0x3fb8aa3b")
e("  s_waitcnt lgkmcnt(0)")
RB = [106 + n for n in range(8)]
for p in range(4):
    a, b = RB[2 * p], RB[2 * p + 1]
    e("  s_lshl_b32 s63, s%d, 16" % (64 + p))
    e("  s_and_b32 s40, s%d, 0xffff0000" % (64 + p))
    e("  v_subrev_f32 v%d, s63, v94" % a)
    e("  v_subrev_f32 v%d, s40, v94" % b)
    def rnd():
        e("  v_cvt_pk_bf16_f32 v78, v%d, v%d" % (a, b))
        e("  v_lshlrev_b32 v%d, 16, v78" % a)
        e("  v_and_b32 v%d, 0xffff0000, v78" % b)
    rnd()
    e("  v_mul_f32 v%d, v%d, v%d" % (a, a, a))
    e("  v_mul_f32 v%d, v%d, v%d" % (b, b, b))
    rnd()
    e("  v_mul_f32 v%d, s61, v%d" % (a, a))
    e("  v_mul_f32 v%d, s61, v%d" % (b, b))
    rnd()
    e("  v_mul_f32 v%d, s62, v%d" % (a, a))
    e("  v_mul_f32 v%d, s62, v%d" % (b, b))
    e("  v_exp_f32 v%d, v%d" % (a, a))
    e("  v_exp_f32 v%d, v%d" % (b, b))
    e("  s_nop 0")
    rnd()
def matvec(dst, src, wbase, nrows):
    for n in range(nrows):
        for k in range(4):
            dw = wbase + 2 * n + (k >> 1)
            tmp = 40 + (k & 3)
            if k & 1:
                e("  s_and_b32 s%d, s%d, 0xffff0000" % (tmp, dw))
            else:
                e("  s_lshl_b32 s%d, s%d, 16" % (tmp, dw))
        for k in range(4):
            tmp = 40 + (k & 3)
            if n == 0:
                e("  v_mul_f32 v%d, s%d, v%d" % (dst[k], tmp, src[n]))
            else:
                e("  v_fmac_f32 v%d, s%d, v%d" % (dst[k], tmp, src[n]))
matvec(S, RB, 68, 8)
matvec(Rr, RB, 84, 8)
e("L_p2_nopre:")

def accumulate(a, c, g):
    e("  v_lshlrev_b32 v78, 16, v%d" % g)
    e("  v_and_b32 v80, 0xffff0000, v%d" % g)
    e("  v_lshlrev_b32 v82, 16, v%d" % (g + 1))
    e("  v_and_b32 v84, 0xffff0000, v%d" % (g + 1))
    e("  v_lshlrev_b32 v86, 16, v%d" % c)
    e("  v_lshrrev_b32 v87, 18, v%d" % a)
    e("  v_mul_f32 v78, v86, v78")
    e("  v_mul_f32 v80, v86, v80")
    e("  v_mul_f32 v82, v86, v82")
    e("  v_mul_f32 v84, v86, v84")
    e("  v_and_b32 v87, 0x1ff8, v87")
    e("  v_cvt_f64_f32 v[78:79], v78")
    e("  v_cvt_f64_f32 v[80:81], v80")
    e("  v_cvt_f64_f32 v[82:83], v82")
    e("  v_cvt_f64_f32 v[84:85], v84")
    e("  ds_add_f64 v87, v[78:79]")
    e("  ds_add_f64 v87, v[80:81] offset:%d" % (BINW * 8))
    e("  ds_add_f64 v87, v[82:83] offset:%d" % (BINW * 16))
    e("  ds_add_f64 v87, v[84:85] offset:%d" % (BINW * 24))

for s in range(NP):
    e("  s_waitcnt vmcnt(%d)" % (NP - 1 - s))
    e("  s_cmp_eq_u32 s%d, 64" % ST_[s])
    e("  s_cbranch_scc1 L_p2_skip%d" % s)
    e("  s_lshr_b64 exec, -1, s%d" % ST_[s])
    accumulate(A[s], C[s], G[s])
    e("L_p2_skip%d:" % s)
e("  s_mov_b64 exec, -1")
e("L_p2_left:")
e("  v_cmp_gt_u32 vcc, v4, v5")
e("  s_cbranch_vccz L_p2_leftdone")
e("  s_ff1_i32_b64 s42, vcc")
e("  v_readlane_b32 s40, v9, s42")
e("  v_readlane_b32 s41, v4, s42")
e("  v_readlane_b32 s43, v5, s42")
e("  s_add_u32 s40, s40, s43")
e("  s_sub_u32 s41, s41, s43")
e("  s_min_u32 s41, s41, 64")
e("  s_add_u32 s43, s43, s41")
e("  s_mov_b32 m0, s42")
e("  v_writelane_b32 v5, s43, m0")
e("  s_sub_u32 s41, 64, s41")
e("  s_lshr_b64 exec, -1, s41")
e("  v_add_lshl_u32 v78, s40, v1, 2")
e("  v_add_lshl_u32 v79, s40, v1, 1")
e("  buffer_load_dword v10, v78, s[12:15], 0 offen")
e("  buffer_load_ushort v27, v79, s[12:15], s33 offen")
e("  s_waitcnt vmcnt(0)")
e("  v_and_b32 v78, 0x1fffff, v10")
e("  buffer_load_dwordx2 v[44:45], v78, s[4:7], 0 offen")
e("  s_waitcnt vmcnt(0)")
accumulate(10, 27, 44)
e("  s_mov_b64 exec, -1")
e("  s_branch L_p2_left")
e("L_p2_leftdone:")
e("  s_waitcnt lgkmcnt(0)")
e("  s_barrier")
e("  s_cmp_ge_u32 s30, 10")
e("  s_cbranch_scc1 L_p2_end")
e("  v_lshlrev_b32 v7, 3, v0")
e("  s_load_dwordx8 s[64:71], s[24:25], 0")
e("  s_load_dwordx8 s[72:79], s[26:27], 0")
e("  ds_read_b64 v[10:11], v7")
e("  ds_read_b64 v[12:13], v7 offset:%d" % (BINW * 8))
e("  ds_read_b64 v[14:15], v7 offset:%d" % (BINW * 16))
e("  ds_read_b64 v[16:17], v7 offset:%d" % (BINW * 24))
e("  s_waitcnt lgkmcnt(0)")
e("  v_cvt_f32_f64 v20, v[10:11]")
e("  v_cvt_f32_f64 v21, v[12:13]")
e("  v_cvt_f32_f64 v22, v[14:15]")
e("  v_cvt_f32_f64 v23, v[16:17]")
matvec([24, 25, 26, 27], [20, 21, 22, 23], 64, 4)
for k in range(4):
    e("  v_mul_f32 v%d, v%d, v%d" % (24 + k, 24 + k, S[k]))
matvec([28, 29, 30, 31], [24, 25, 26, 27], 72, 4)
e("  v_lshlrev_b32 v32, 16, v96")
e("  v_and_b32 v33, 0xffff0000, v96")
e("  v_lshlrev_b32 v34, 16, v97")
e("  v_and_b32 v35, 0xffff0000, v97")
for k in range(4):
    e("  v_fmac_f32 v%d, v%d, v%d" % (32 + k, 28 + k, Rr[k]))
e("  v_cvt_pk_bf16_f32 v36, v32, v33")
e("  v_cvt_pk_bf16_f32 v37, v34, v35")
e("  buffer_store_dwordx2 v[36:37], v92, s[16:19], 0 offen")
e("L_p2_end:")
e("  s_endpgm")

e('.section .rodata,"a"')
for k, nv in ((K1, 92), (K2, 114)):
    e(".p2align 6")
    e(".amdhsa_kernel %s" % k)
    e("  .amdhsa_next_free_vgpr %d" % nv)
    e("  .amdhsa_next_free_sgpr 102")
    e("  .amdhsa_accum_offset %d" % ((nv + 3) // 4 * 4))
    e("  .amdhsa_group_segment_fixed_size 0")
    e("  .amdhsa_kernarg_size 112")
    e("  .amdhsa_user_sgpr_count 2")
    e("  .amdhsa_user_sgpr_kernarg_segment_ptr 1")
    e("  .amdhsa_system_sgpr_workgroup_id_x 1")
    e("  .amdhsa_float_denorm_mode_32 3")
    e(".end_amdhsa_kernel")

open(sys.argv[1], "w").write("\n".join(out) + "\n")
```

```python
import sys

NAME = "gather_scatter__molecular_angular_gemnet__graph"
NWG = 250
CH = 10240
BINW = 640
WS_A = 0
WS_C = NWG * CH * 4
WS_T = WS_C + NWG * CH * 2
WS_SIZE = 268435456

out = []
def e(s=""):
    out.append(s)

opts = dict(st="sc1", ldnt="nt", stamp="0")
for a in sys.argv[2:]:
    k, v = a.split("=")
    opts[k] = v
ST = "" if opts["st"] == "plain" else " " + opts["st"].replace("+", " ")
LDNT = "" if opts["ldnt"] == "plain" else " " + opts["ldnt"]

STAMP = opts["stamp"] == "1"
STAMP_OFF = 0x4000000
def stamp(k):
    if not STAMP:
        return
    e("  s_memrealtime s[100:101]")
    e("  s_waitcnt lgkmcnt(0)")
    e("  v_writelane_b32 v120, s100, %d" % (2 * k))
    e("  v_writelane_b32 v120, s101, %d" % (2 * k + 1))
def stamp_flush(srd, launch):
    if not STAMP:
        return
    if opts.get("dbg") == str(launch):
        e("  s_cmp_lg_u32 s2, %s" % opts.get("dbgwg", "0"))
        e("  s_cbranch_scc1 L_dbg_skip%d" % launch)
        e("  s_load_dwordx2 s[96:97], s[0:1], 96")
        e("  s_waitcnt lgkmcnt(0)")
        e("  s_mov_b32 s98, 256")
        e("  s_mov_b32 s99, 0x20000")
        e("  s_mov_b64 exec, -1")
        e("  v_and_b32 v121, 63, v0")
        e("  v_lshlrev_b32 v122, 1, v121")
        e("  v_cmp_gt_u32 vcc, 64, v0")
        e("  v_and_b32 v123, 1, v121")
        e("  v_cmp_eq_u32 s[94:95], 0, v123")
        e("  s_and_b64 vcc, vcc, s[94:95]")
        e("  s_and_b64 exec, exec, vcc")
        e("  s_cbranch_execz L_dbg_skip%d" % launch)
        e("  buffer_store_dword v120, v122, s[96:99], 0 offen")
        e("L_dbg_skip%d:" % launch)
    e("  s_mov_b64 exec, -1")
    e("  v_and_b32 v121, 63, v0")
    e("  v_lshlrev_b32 v121, 2, v121")
    e("  v_lshrrev_b32 v122, 6, v0")
    e("  v_lshlrev_b32 v122, 7, v122")
    e("  v_add_u32 v121, v121, v122")
    e("  s_lshl_b32 s100, s2, 11")
    e("  s_add_u32 s100, s100, %d" % (STAMP_OFF + launch * 256 * 2048))
    e("  s_mov_b64 exec, 0xffffffff")
    e("  buffer_store_dword v120, v121, %s, s100 offen" % srd)

header = open("cdna_kernels/%s.s.ref" % NAME).read().split("\n")
for line in header:
    if line.startswith("; Override launch") or line.startswith("; grid=ceil") or "@launch" in line:
        continue
    if line.startswith(";"):
        e(line)
    else:
        break
P1_LDS = 2048 + CH * 4 + CH * 2
P2_LDS = 4 * BINW * 8
e("; Two launches: bin the triplets by destination range, then accumulate per range.")
e("; @launch kernel=%s_kernel grid=(%d,1,1) block=(1024,1,1) lds=%d" % (NAME, NWG, P1_LDS))
e("; @launch kernel=gs_acc_kernel grid=(%d,1,1) block=(1024,1,1) lds=%d" % (NWG, P2_LDS))
e('.amdgcn_target "amdgcn-amd-amdhsa--gfx950"')
e(".text")

CNT, OFF, PA = 0, 1024, 2048
PC = PA + CH * 4
K1 = NAME + "_kernel"
e(".globl %s" % K1)
e(".p2align 8")
e(".type %s,@function" % K1)
e("%s:" % K1)
e("  s_cmp_ge_u32 s2, %d" % NWG)
e("  s_cbranch_scc1 L_p1_end")
stamp(0)
e("  s_load_dwordx2 s[4:5], s[0:1], 8")
e("  s_load_dwordx2 s[8:9], s[0:1], 16")
e("  s_load_dwordx2 s[12:13], s[0:1], 32")
e("  s_load_dwordx2 s[30:31], s[0:1], 48")
e("  s_load_dwordx2 s[16:17], s[0:1], 104")
e("  v_lshlrev_b32 v1, 4, v0")
e("  v_lshlrev_b32 v2, 3, v0")
e("  v_lshlrev_b32 v3, 2, v0")
e("  v_mov_b32 v90, 1")
e("  v_mov_b32 v70, 0")
e("  s_mul_i32 s20, s2, %d" % (CH * 4))
e("  s_add_u32 s21, s20, 16384")
e("  s_add_u32 s22, s20, 32768")
e("  s_mul_i32 s23, s2, %d" % (CH * 2))
e("  s_add_u32 s24, s23, 8192")
e("  s_add_u32 s25, s23, 16384")
e("  s_mov_b32 s6, %d" % (NWG * CH * 4))
e("  s_mov_b32 s7, 0x20000")
e("  s_mov_b32 s10, %d" % (NWG * CH * 4))
e("  s_mov_b32 s11, 0x20000")
e("  s_mov_b32 s14, %d" % (NWG * CH * 2))
e("  s_mov_b32 s15, 0x20000")
e("  s_mov_b32 s18, %d" % WS_SIZE)
e("  s_mov_b32 s19, 0x20000")
e("  s_mov_b32 s27, %d" % (-BINW & 0xFFFFFFFF))
e("  s_mov_b32 s28, 0x3e22f900")
e("  s_mov_b32 s29, 0x36036e4e")
e("  v_cmp_gt_u32 vcc, 0x100, v0")
e("  s_and_saveexec_b64 s[32:33], vcc")
e("  ds_write_b32 v3, v70 offset:%d" % CNT)
e("  s_mov_b64 exec, s[32:33]")
e("  s_waitcnt lgkmcnt(0)")
O = [4 + j for j in range(10)]
I = [14 + j for j in range(10)]
N = [24 + j for j in range(5)]
H = [30 + j for j in range(10)]
D = [40 + j for j in range(10)]
R = [50 + j for j in range(10)]
F = [60 + j for j in range(10)]
e("  buffer_load_dwordx4 v[4:7], v1, s[8:11], s20 offen" + LDNT)
e("  buffer_load_dwordx4 v[8:11], v1, s[8:11], s21 offen" + LDNT)
e("  buffer_load_dwordx2 v[12:13], v2, s[8:11], s22 offen" + LDNT)
e("  buffer_load_dwordx4 v[14:17], v1, s[4:7], s20 offen" + LDNT)
e("  buffer_load_dwordx2 v[24:25], v2, s[12:15], s23 offen" + LDNT)
e("  buffer_load_dwordx4 v[18:21], v1, s[4:7], s21 offen" + LDNT)
e("  buffer_load_dwordx2 v[26:27], v2, s[12:15], s24 offen" + LDNT)
e("  buffer_load_dwordx2 v[22:23], v2, s[4:7], s22 offen" + LDNT)
e("  buffer_load_dword v28, v3, s[12:15], s25 offen" + LDNT)
e("  s_load_dword s26, s[30:31], 0")
e("  s_waitcnt lgkmcnt(0)")
e("  s_lshl_b32 s26, s26, 16")
e("  s_barrier")
stamp(1)

def hist(js):
    for j in js:
        e("  v_lshrrev_b32 v%d, 7, v%d" % (F[j], O[j]))
    for j in js:
        e("  v_mul_u32_u24 v%d, 0xcccd, v%d" % (F[j], F[j]))
    for j in js:
        e("  v_lshrrev_b32 v%d, 18, v%d" % (F[j], F[j]))
    for j in js:
        e("  v_lshlrev_b32 v%d, 2, v%d" % (H[j], F[j]))
    for j in js:
        e("  ds_add_rtn_u32 v%d, v%d, v90 offset:%d" % (R[j], H[j], CNT))
    for j in js:
        e("  v_mad_i32_i24 v%d, v%d, s27, v%d" % (D[j], F[j], O[j]))

e("  s_waitcnt vmcnt(8)")
hist([0, 1, 2, 3])
e("  s_waitcnt vmcnt(7)")
hist([4, 5, 6, 7])
e("  s_waitcnt vmcnt(6)")
hist([8, 9])
e("  s_waitcnt lgkmcnt(0)")
e("  s_barrier")
stamp(2)
e("  v_and_b32 v71, 63, v0")
e("  v_lshlrev_b32 v72, 4, v71")
e("  ds_read_b128 v[74:77], v72 offset:%d" % CNT)
e("  s_waitcnt lgkmcnt(0)")
e("  v_add_u32 v79, v74, v75")
e("  v_add_u32 v80, v79, v76")
e("  v_add_u32 v81, v80, v77")
e("  v_mov_b32 v82, v81")
for sh in (1, 2, 4, 8):
    e("  s_nop 1")
    e("  v_add_u32_dpp v82, v82, v82 row_shr:%d row_mask:0xf bank_mask:0xf bound_ctrl:0" % sh)
e("  s_nop 1")
e("  v_add_u32_dpp v82, v82, v82 row_bcast:15 row_mask:0xa bank_mask:0xf")
e("  s_nop 1")
e("  v_add_u32_dpp v82, v82, v82 row_bcast:31 row_mask:0xc bank_mask:0xf")
e("  v_sub_u32 v84, v82, v81")
e("  v_add_u32 v85, v84, v74")
e("  v_add_u32 v86, v84, v79")
e("  v_add_u32 v87, v84, v80")
e("  ds_write_b128 v72, v[84:87] offset:%d" % OFF)
e("  s_waitcnt lgkmcnt(0)")
for j in range(10):
    e("  ds_read_b32 v%d, v%d offset:%d" % (F[j], H[j], OFF))
for k in range(4):
    e("  v_lshl_or_b32 v%d, v%d, 16, v%d" % (74 + k, 74 + k, 84 + k))
e("  s_waitcnt lgkmcnt(0)")
for j in range(10):
    e("  v_add_u32 v%d, v%d, v%d" % (R[j], R[j], F[j]))

def place(js, nregs):
    for j in js:
        e("  v_lshlrev_b32 v%d, 3, v%d" % (I[j], I[j]))
    for j in js:
        e("  v_lshl_or_b32 v%d, v%d, 21, v%d" % (I[j], D[j], I[j]))
    for j in js:
        e("  v_lshlrev_b32 v%d, 2, v%d" % (H[j], R[j]))
    for j in js:
        e("  ds_write_b32 v%d, v%d offset:%d" % (H[j], I[j], PA))
    np_ = len(nregs)
    X0 = [F[js[2 * p]] for p in range(np_)]
    X1 = [F[js[2 * p + 1]] for p in range(np_)]
    Q0 = [O[js[2 * p]] for p in range(np_)]
    Q1 = [O[js[2 * p + 1]] for p in range(np_)]
    for p in range(np_):
        e("  v_lshlrev_b32 v%d, 16, v%d" % (X0[p], nregs[p]))
        e("  v_and_b32 v%d, 0xffff0000, v%d" % (X1[p], nregs[p]))
    for p in range(np_):
        e("  v_mul_f32 v%d, s26, v%d" % (X0[p], X0[p]))
        e("  v_mul_f32 v%d, s26, v%d" % (X1[p], X1[p]))
    for p in range(np_):
        e("  v_cvt_pk_bf16_f32 v%d, v%d, v%d" % (nregs[p], X0[p], X1[p]))
    for p in range(np_):
        e("  v_lshlrev_b32 v%d, 16, v%d" % (X0[p], nregs[p]))
        e("  v_and_b32 v%d, 0xffff0000, v%d" % (X1[p], nregs[p]))
    for p in range(np_):
        e("  v_mul_f32 v%d, s28, v%d" % (Q0[p], X0[p]))
        e("  v_mul_f32 v%d, s28, v%d" % (Q1[p], X1[p]))
    for p in range(np_):
        e("  v_fract_f32 v%d, v%d" % (Q0[p], Q0[p]))
        e("  v_fract_f32 v%d, v%d" % (Q1[p], Q1[p]))
    for p in range(np_):
        e("  v_fma_f32 v%d, v%d, s29, v%d" % (Q0[p], X0[p], Q0[p]))
        e("  v_fma_f32 v%d, v%d, s29, v%d" % (Q1[p], X1[p], Q1[p]))
    for p in range(np_):
        e("  v_cos_f32 v%d, v%d" % (Q0[p], Q0[p]))
        e("  v_cos_f32 v%d, v%d" % (Q1[p], Q1[p]))
    for j in js:
        e("  v_lshlrev_b32 v%d, 1, v%d" % (H[j], R[j]))
    for p in range(np_):
        e("  v_cvt_pk_bf16_f32 v%d, v%d, v%d" % (nregs[p], Q0[p], Q1[p]))
    for p in range(np_):
        e("  ds_write_b16 v%d, v%d offset:%d" % (H[js[2 * p]], nregs[p], PC))
        e("  ds_write_b16_d16_hi v%d, v%d offset:%d" % (H[js[2 * p + 1]], nregs[p], PC))

stamp(3)
e("  s_waitcnt vmcnt(4)")
place([0, 1, 2, 3], [24, 25])
e("  s_waitcnt vmcnt(2)")
place([4, 5, 6, 7], [26, 27])
e("  s_waitcnt vmcnt(0)")
place([8, 9], [28])
e("  v_lshrrev_b32 v91, 6, v0")
e("  s_waitcnt lgkmcnt(0)")
e("  v_readfirstlane_b32 s34, v91")
e("  s_barrier")
stamp(4)
e("  ds_read_b128 v[4:7], v1 offset:%d" % PA)
e("  ds_read_b128 v[8:11], v1 offset:%d" % (PA + 16384))
e("  ds_read_b128 v[12:15], v1 offset:%d" % (PA + 32768))
e("  ds_read_b128 v[16:19], v1 offset:%d" % (PA + 49152))
e("  s_add_u32 s35, s20, %d" % WS_A)
e("  s_add_u32 s36, s21, %d" % WS_A)
e("  s_add_u32 s37, s22, %d" % WS_A)
e("  s_add_u32 s38, s23, %d" % (WS_C - 8192))
e("  s_cmp_lt_u32 s34, 8")
e("  s_cselect_b32 s37, s37, s38")
e("  s_add_u32 s38, s23, %d" % (WS_C + 8192))
e("  s_waitcnt lgkmcnt(3)")
e("  buffer_store_dwordx4 v[4:7], v1, s[16:19], s35 offen" + ST)
e("  s_waitcnt lgkmcnt(2)")
e("  buffer_store_dwordx4 v[8:11], v1, s[16:19], s36 offen" + ST)
e("  s_waitcnt lgkmcnt(1)")
e("  buffer_store_dwordx4 v[12:15], v1, s[16:19], s37 offen" + ST)
e("  s_waitcnt lgkmcnt(0)")
e("  s_cmp_ge_u32 s34, 12")
e("  s_cbranch_scc1 L_p1_fin")
e("  buffer_store_dwordx4 v[16:19], v1, s[16:19], s38 offen" + ST)
e("  s_cmp_ge_u32 s34, 4")
e("  s_cbranch_scc1 L_p1_fin")
e("  s_lshl_b32 s39, s34, 10")
e("  s_lshl_b32 s40, s2, 2")
e("  s_add_u32 s39, s39, s40")
e("  s_add_u32 s39, s39, %d" % WS_T)
e("  v_lshlrev_b32 v72, 12, v71")
e("  s_cmp_eq_u32 s34, 0")
e("  s_cbranch_scc1 L_p1_t0")
e("  s_cmp_eq_u32 s34, 1")
e("  s_cbranch_scc1 L_p1_t1")
e("  s_cmp_eq_u32 s34, 2")
e("  s_cbranch_scc1 L_p1_t2")
e("  buffer_store_dword v77, v72, s[16:19], s39 offen" + ST)
e("  s_branch L_p1_fin")
e("L_p1_t0:")
e("  buffer_store_dword v74, v72, s[16:19], s39 offen" + ST)
e("  s_branch L_p1_fin")
e("L_p1_t1:")
e("  buffer_store_dword v75, v72, s[16:19], s39 offen" + ST)
e("  s_branch L_p1_fin")
e("L_p1_t2:")
e("  buffer_store_dword v76, v72, s[16:19], s39 offen" + ST)
e("L_p1_fin:")
stamp(5)
if STAMP:
    e("  s_waitcnt vmcnt(0)")
stamp(6)
stamp_flush("s[16:19]", 0)
e("L_p1_end:")
e("  s_endpgm")

K2 = "gs_acc_kernel"
e(".globl %s" % K2)
e(".p2align 8")
e(".type %s,@function" % K2)
e("%s:" % K2)
e("  s_cmp_ge_u32 s2, %d" % NWG)
e("  s_cbranch_scc1 L_p2_end")
stamp(0)
e("  s_load_dwordx2 s[4:5], s[0:1], 0")
e("  s_load_dwordx2 s[8:9], s[0:1], 24")
e("  s_load_dwordx2 s[12:13], s[0:1], 104")
e("  s_load_dwordx2 s[16:17], s[0:1], 88")
e("  s_load_dwordx4 s[20:23], s[0:1], 56")
e("  s_load_dwordx4 s[24:27], s[0:1], 72")
e("  s_load_dwordx2 s[28:29], s[0:1], 40")
VL, VU, VT, VN, VDONE = 1, 2, 3, 4, 5
e("  v_and_b32 v1, 63, v0")
e("  v_lshrrev_b32 v6, 6, v0")
e("  s_mov_b32 s6, 1280000")
e("  s_mov_b32 s7, 0x20000")
e("  s_mov_b32 s10, 320000")
e("  s_mov_b32 s11, 0x20000")
e("  s_mov_b32 s14, %d" % WS_SIZE)
e("  s_mov_b32 s15, 0x20000")
e("  s_mov_b32 s18, 1280000")
e("  s_mov_b32 s19, 0x20000")
e("  v_readfirstlane_b32 s30, v6")
e("  s_mul_i32 s31, s2, %d" % BINW)
e("  s_lshl_b32 s32, s2, 10")
e("  s_add_u32 s32, s32, %d" % WS_T)
e("  s_mov_b32 s33, %d" % WS_C)
e("  v_mov_b32 v8, 0")
e("  v_mov_b32 v9, 0")
e("  v_mov_b32 v10, 0")
e("  v_mov_b32 v11, 0")
e("  v_lshlrev_b32 v7, 4, v0")
e("  ds_write_b128 v7, v[8:11]")
e("  v_cmp_gt_u32 vcc, 0x100, v0")
e("  s_and_saveexec_b64 s[34:35], vcc")
e("  ds_write_b128 v7, v[8:11] offset:16384")
e("  s_mov_b64 exec, s[34:35]")
e("  v_add_u32 v92, s31, v0")
e("  v_lshlrev_b32 v93, 1, v92")
e("  v_lshlrev_b32 v92, 3, v92")
e("  s_lshl_b32 s36, s30, 4")
e("  v_add_u32 v6, s36, v1")
e("  v_lshlrev_b32 v7, 2, v6")
e("  s_waitcnt lgkmcnt(0)")
e("  buffer_load_dword v2, v7, s[12:15], s32 offen")
e("  buffer_load_ushort v94, v93, s[8:11], 0 offen")
e("  buffer_load_dwordx2 v[96:97], v92, s[4:7], 0 offen")
e("  s_waitcnt vmcnt(2)")
stamp(1)
e("  v_lshrrev_b32 v4, 16, v2")
e("  v_and_b32 v2, 0xffff, v2")
e("  s_mov_b32 s37, %d" % CH)
e("  v_mad_u32_u24 v2, v6, s37, v2")
e("  v_cmp_gt_u32 vcc, %d, v6" % NWG)
e("  v_cmp_gt_u32 s[38:39], 16, v1")
e("  s_and_b64 vcc, vcc, s[38:39]")
e("  v_cndmask_b32 v4, 0, v4, vcc")
e("  v_cndmask_b32 v2, 0, v2, vcc")
e("  v_min_u32 v5, 64, v4")
e("  v_cmp_lt_u32 vcc, 64, v4")
e("  s_mov_b32 s40, 0")
e("  s_mov_b32 s41, 0")
e("  s_cbranch_vccz L_p2_nolong")
e("  s_ff1_i32_b64 s42, vcc")
e("  v_readlane_b32 s40, v2, s42")
e("  v_readlane_b32 s41, v4, s42")
e("  s_add_u32 s40, s40, 64")
e("  s_sub_u32 s41, s41, 64")
e("  s_min_u32 s41, s41, 64")
e("  s_add_u32 s43, s41, 64")
e("  s_mov_b32 m0, s42")
e("  v_writelane_b32 v5, s43, m0")
e("L_p2_nolong:")
e("  v_min_u32 v3, 64, v4")
e("  v_writelane_b32 v2, s40, 16")
e("  v_writelane_b32 v3, s41, 16")
e("  v_sub_u32 v3, 64, v3")
e("  v_mov_b32 v9, v2")
NP = 17
A = [10 + s for s in range(NP)]
C = [27 + s for s in range(NP)]
G = [44 + 2 * s for s in range(NP)]
ST_ = [44 + s for s in range(NP)]
for s in range(NP):
    e("  v_readlane_b32 s61, v2, %d" % s)
    e("  v_readlane_b32 s%d, v3, %d" % (ST_[s], s))
    e("  s_min_u32 s62, s%d, 63" % ST_[s])
    e("  s_lshr_b64 exec, -1, s62")
    ta, tc = (78, 79) if s % 2 == 0 else (80, 81)
    e("  v_add_lshl_u32 v%d, s61, v1, 2" % ta)
    e("  v_add_lshl_u32 v%d, s61, v1, 1" % tc)
    e("  buffer_load_dword v%d, v%d, s[12:15], 0 offen" % (A[s], ta))
    e("  buffer_load_ushort v%d, v%d, s[12:15], s33 offen" % (C[s], tc))
e("  s_mov_b64 exec, -1")
e("  s_barrier")
stamp(2)
for s in range(NP):
    e("  s_waitcnt vmcnt(%d)" % (2 * NP - 1 - s))
    e("  s_min_u32 s62, s%d, 63" % ST_[s])
    e("  s_lshr_b64 exec, -1, s62")
    ta = 78 + (s % 4)
    e("  v_and_b32 v%d, 0x1fffff, v%d" % (ta, A[s]))
    e("  buffer_load_dwordx2 v[%d:%d], v%d, s[4:7], 0 offen" % (G[s], G[s] + 1, ta))
e("  s_mov_b64 exec, -1")
stamp(3)
S = [98, 99, 100, 101]
Rr = [102, 103, 104, 105]
e("  s_cmp_ge_u32 s30, 10")
e("  s_cbranch_scc1 L_p2_nopre")
e("  s_load_dwordx4 s[64:67], s[28:29], 0")
e("  s_load_dwordx16 s[68:83], s[22:23], 0")
e("  s_load_dwordx16 s[84:99], s[20:21], 0")
e("  v_lshlrev_b32 v94, 16, v94")
e("  s_mov_b32 s61, 0xc1200000")
e("  s_mov_b32 s62, 0x3fb8aa3b")
e("  s_waitcnt lgkmcnt(0)")
RB = [106 + n for n in range(8)]
for p in range(4):
    a, b = RB[2 * p], RB[2 * p + 1]
    e("  s_lshl_b32 s63, s%d, 16" % (64 + p))
    e("  s_and_b32 s40, s%d, 0xffff0000" % (64 + p))
    e("  v_subrev_f32 v%d, s63, v94" % a)
    e("  v_subrev_f32 v%d, s40, v94" % b)
    def rnd():
        e("  v_cvt_pk_bf16_f32 v78, v%d, v%d" % (a, b))
        e("  v_lshlrev_b32 v%d, 16, v78" % a)
        e("  v_and_b32 v%d, 0xffff0000, v78" % b)
    rnd()
    e("  v_mul_f32 v%d, v%d, v%d" % (a, a, a))
    e("  v_mul_f32 v%d, v%d, v%d" % (b, b, b))
    rnd()
    e("  v_mul_f32 v%d, s61, v%d" % (a, a))
    e("  v_mul_f32 v%d, s61, v%d" % (b, b))
    rnd()
    e("  v_mul_f32 v%d, s62, v%d" % (a, a))
    e("  v_mul_f32 v%d, s62, v%d" % (b, b))
    e("  v_exp_f32 v%d, v%d" % (a, a))
    e("  v_exp_f32 v%d, v%d" % (b, b))
    e("  s_nop 0")
    rnd()
def matvec(dst, src, wbase, nrows):
    for n in range(nrows):
        for k in range(4):
            dw = wbase + 2 * n + (k >> 1)
            tmp = 40 + (k & 3)
            if k & 1:
                e("  s_and_b32 s%d, s%d, 0xffff0000" % (tmp, dw))
            else:
                e("  s_lshl_b32 s%d, s%d, 16" % (tmp, dw))
        for k in range(4):
            tmp = 40 + (k & 3)
            if n == 0:
                e("  v_mul_f32 v%d, s%d, v%d" % (dst[k], tmp, src[n]))
            else:
                e("  v_fmac_f32 v%d, s%d, v%d" % (dst[k], tmp, src[n]))
matvec(S, RB, 68, 8)
matvec(Rr, RB, 84, 8)
e("L_p2_nopre:")
stamp(4)

def accumulate(a, c, g):
    e("  v_lshlrev_b32 v78, 16, v%d" % g)
    e("  v_and_b32 v80, 0xffff0000, v%d" % g)
    e("  v_lshlrev_b32 v82, 16, v%d" % (g + 1))
    e("  v_and_b32 v84, 0xffff0000, v%d" % (g + 1))
    e("  v_lshlrev_b32 v86, 16, v%d" % c)
    e("  v_lshrrev_b32 v87, 18, v%d" % a)
    e("  v_mul_f32 v78, v86, v78")
    e("  v_mul_f32 v80, v86, v80")
    e("  v_mul_f32 v82, v86, v82")
    e("  v_mul_f32 v84, v86, v84")
    e("  v_and_b32 v87, 0x1ff8, v87")
    e("  v_cvt_f64_f32 v[78:79], v78")
    e("  v_cvt_f64_f32 v[80:81], v80")
    e("  v_cvt_f64_f32 v[82:83], v82")
    e("  v_cvt_f64_f32 v[84:85], v84")
    e("  ds_add_f64 v87, v[78:79]")
    e("  ds_add_f64 v87, v[80:81] offset:%d" % (BINW * 8))
    e("  ds_add_f64 v87, v[82:83] offset:%d" % (BINW * 16))
    e("  ds_add_f64 v87, v[84:85] offset:%d" % (BINW * 24))

for s in range(NP):
    e("  s_waitcnt vmcnt(%d)" % (NP - 1 - s))
    e("  s_cmp_eq_u32 s%d, 64" % ST_[s])
    e("  s_cbranch_scc1 L_p2_skip%d" % s)
    e("  s_lshr_b64 exec, -1, s%d" % ST_[s])
    accumulate(A[s], C[s], G[s])
    e("L_p2_skip%d:" % s)
e("  s_mov_b64 exec, -1")
e("L_p2_left:")
e("  v_cmp_gt_u32 vcc, v4, v5")
e("  s_cbranch_vccz L_p2_leftdone")
e("  s_ff1_i32_b64 s42, vcc")
e("  v_readlane_b32 s40, v9, s42")
e("  v_readlane_b32 s41, v4, s42")
e("  v_readlane_b32 s43, v5, s42")
e("  s_add_u32 s40, s40, s43")
e("  s_sub_u32 s41, s41, s43")
e("  s_min_u32 s41, s41, 64")
e("  s_add_u32 s43, s43, s41")
e("  s_mov_b32 m0, s42")
e("  v_writelane_b32 v5, s43, m0")
e("  s_sub_u32 s41, 64, s41")
e("  s_lshr_b64 exec, -1, s41")
e("  v_add_lshl_u32 v78, s40, v1, 2")
e("  v_add_lshl_u32 v79, s40, v1, 1")
e("  buffer_load_dword v10, v78, s[12:15], 0 offen")
e("  buffer_load_ushort v27, v79, s[12:15], s33 offen")
e("  s_waitcnt vmcnt(0)")
e("  v_and_b32 v78, 0x1fffff, v10")
e("  buffer_load_dwordx2 v[44:45], v78, s[4:7], 0 offen")
e("  s_waitcnt vmcnt(0)")
accumulate(10, 27, 44)
e("  s_mov_b64 exec, -1")
e("  s_branch L_p2_left")
e("L_p2_leftdone:")
e("  s_waitcnt lgkmcnt(0)")
stamp(5)
e("  s_barrier")
e("  s_cmp_ge_u32 s30, 10")
e("  s_cbranch_scc1 L_p2_fin")
e("  v_lshlrev_b32 v7, 3, v0")
e("  s_load_dwordx8 s[64:71], s[24:25], 0")
e("  s_load_dwordx8 s[72:79], s[26:27], 0")
e("  ds_read_b64 v[10:11], v7")
e("  ds_read_b64 v[12:13], v7 offset:%d" % (BINW * 8))
e("  ds_read_b64 v[14:15], v7 offset:%d" % (BINW * 16))
e("  ds_read_b64 v[16:17], v7 offset:%d" % (BINW * 24))
e("  s_waitcnt lgkmcnt(0)")
e("  v_cvt_f32_f64 v20, v[10:11]")
e("  v_cvt_f32_f64 v21, v[12:13]")
e("  v_cvt_f32_f64 v22, v[14:15]")
e("  v_cvt_f32_f64 v23, v[16:17]")
matvec([24, 25, 26, 27], [20, 21, 22, 23], 64, 4)
for k in range(4):
    e("  v_mul_f32 v%d, v%d, v%d" % (24 + k, 24 + k, S[k]))
matvec([28, 29, 30, 31], [24, 25, 26, 27], 72, 4)
e("  v_lshlrev_b32 v32, 16, v96")
e("  v_and_b32 v33, 0xffff0000, v96")
e("  v_lshlrev_b32 v34, 16, v97")
e("  v_and_b32 v35, 0xffff0000, v97")
for k in range(4):
    e("  v_fmac_f32 v%d, v%d, v%d" % (32 + k, 28 + k, Rr[k]))
e("  v_cvt_pk_bf16_f32 v36, v32, v33")
e("  v_cvt_pk_bf16_f32 v37, v34, v35")
e("  buffer_store_dwordx2 v[36:37], v92, s[16:19], 0 offen")
e("L_p2_fin:")
if STAMP:
    e("  s_waitcnt vmcnt(0)")
    stamp(6)
    stamp_flush("s[12:15]", 1)
e("L_p2_end:")
e("  s_endpgm")

e('.section .rodata,"a"')
for k, nv in ((K1, 124 if STAMP else 92), (K2, 124 if STAMP else 114)):
    e(".p2align 6")
    e(".amdhsa_kernel %s" % k)
    e("  .amdhsa_next_free_vgpr %d" % nv)
    e("  .amdhsa_next_free_sgpr 102")
    e("  .amdhsa_accum_offset %d" % ((nv + 3) // 4 * 4))
    e("  .amdhsa_group_segment_fixed_size 0")
    e("  .amdhsa_kernarg_size 112")
    e("  .amdhsa_user_sgpr_count 2")
    e("  .amdhsa_user_sgpr_kernarg_segment_ptr 1")
    e("  .amdhsa_system_sgpr_workgroup_id_x 1")
    e("  .amdhsa_float_denorm_mode_32 3")
    e(".end_amdhsa_kernel")

open(sys.argv[1], "w").write("\n".join(out) + "\n")
```

```python
import sys

NAME = "gather_scatter__molecular_angular_gemnet__graph"
NWG = 250
CH = 10240
BINW = 640
WS_A = 0
WS_C = NWG * CH * 4
WS_T = WS_C + NWG * CH * 2
WS_SIZE = 268435456

out = []
def e(s=""):
    out.append(s)

opts = dict(st="sc1", ldnt="nt", stamp="0")
for a in sys.argv[2:]:
    k, v = a.split("=")
    opts[k] = v
ST = "" if opts["st"] == "plain" else " " + opts["st"].replace("+", " ")
LDNT = "" if opts["ldnt"] == "plain" else " " + opts["ldnt"]

STAMP = opts["stamp"] == "1"
STAMP_OFF = 0x4000000
def stamp(k):
    if not STAMP:
        return
    e("  s_memrealtime s[100:101]")
    e("  s_waitcnt lgkmcnt(0)")
    e("  v_writelane_b32 v120, s100, %d" % (2 * k))
    e("  v_writelane_b32 v120, s101, %d" % (2 * k + 1))
def stamp_flush(srd, launch):
    if not STAMP:
        return
    if opts.get("dbg") == str(launch):
        e("  s_cmp_lg_u32 s2, %s" % opts.get("dbgwg", "0"))
        e("  s_cbranch_scc1 L_dbg_skip%d" % launch)
        e("  s_load_dwordx2 s[96:97], s[0:1], 96")
        e("  s_waitcnt lgkmcnt(0)")
        e("  s_mov_b32 s98, 256")
        e("  s_mov_b32 s99, 0x20000")
        e("  s_mov_b64 exec, -1")
        e("  v_and_b32 v121, 63, v0")
        e("  v_lshlrev_b32 v122, 1, v121")
        e("  v_cmp_gt_u32 vcc, 64, v0")
        e("  v_and_b32 v123, 1, v121")
        e("  v_cmp_eq_u32 s[94:95], 0, v123")
        e("  s_and_b64 vcc, vcc, s[94:95]")
        e("  s_and_b64 exec, exec, vcc")
        e("  s_cbranch_execz L_dbg_skip%d" % launch)
        if launch == 1:
            e("  s_mov_b32 s94, %d" % (STAMP_OFF + int(opts.get("dbgwg", "0")) * 2048))
            e("  v_lshlrev_b32 v123, 2, v121")
            e("  buffer_load_dword v119, v123, %s, s94 offen" % srd)
            e("  s_waitcnt vmcnt(0)")
            e("  buffer_store_dword v119, v122, s[96:99], 0 offen")
            e("  s_waitcnt vmcnt(0)")
            e("  v_cmp_gt_u32 vcc, 16, v121")
            e("  s_and_b64 exec, exec, vcc")
            e("  buffer_store_dword v120, v122, s[96:99], 0 offen offset:32")
        else:
            e("  buffer_store_dword v120, v122, s[96:99], 0 offen")
        e("L_dbg_skip%d:" % launch)
    e("  s_mov_b64 exec, -1")
    e("  v_and_b32 v121, 63, v0")
    e("  v_lshlrev_b32 v121, 2, v121")
    e("  v_lshrrev_b32 v122, 6, v0")
    e("  v_lshlrev_b32 v122, 7, v122")
    e("  v_add_u32 v121, v121, v122")
    e("  s_lshl_b32 s100, s2, 11")
    e("  s_add_u32 s100, s100, %d" % (STAMP_OFF + launch * 256 * 2048))
    e("  s_mov_b64 exec, 0xffffffff")
    e("  buffer_store_dword v120, v121, %s, s100 offen" % srd)

header = open("cdna_kernels/%s.s.ref" % NAME).read().split("\n")
for line in header:
    if line.startswith("; Override launch") or line.startswith("; grid=ceil") or "@launch" in line:
        continue
    if line.startswith(";"):
        e(line)
    else:
        break
P1_LDS = 2048 + CH * 4 + CH * 2
P2_LDS = 4 * BINW * 8
e("; Two launches: bin the triplets by destination range, then accumulate per range.")
e("; @launch kernel=%s_kernel grid=(%d,1,1) block=(1024,1,1) lds=%d" % (NAME, NWG, P1_LDS))
e("; @launch kernel=gs_acc_kernel grid=(%d,1,1) block=(1024,1,1) lds=%d" % (NWG, P2_LDS))
e('.amdgcn_target "amdgcn-amd-amdhsa--gfx950"')
e(".text")

CNT, OFF, PA = 0, 1024, 2048
PC = PA + CH * 4
K1 = NAME + "_kernel"
e(".globl %s" % K1)
e(".p2align 8")
e(".type %s,@function" % K1)
e("%s:" % K1)
e("  s_cmp_ge_u32 s2, %d" % NWG)
e("  s_cbranch_scc1 L_p1_end")
stamp(0)
e("  s_load_dwordx2 s[4:5], s[0:1], 8")
e("  s_load_dwordx2 s[8:9], s[0:1], 16")
e("  s_load_dwordx2 s[12:13], s[0:1], 32")
e("  s_load_dwordx2 s[30:31], s[0:1], 48")
e("  s_load_dwordx2 s[16:17], s[0:1], 104")
e("  v_lshlrev_b32 v1, 4, v0")
e("  v_lshlrev_b32 v2, 3, v0")
e("  v_lshlrev_b32 v3, 2, v0")
e("  v_mov_b32 v90, 1")
e("  v_mov_b32 v70, 0")
e("  s_mul_i32 s20, s2, %d" % (CH * 4))
e("  s_add_u32 s21, s20, 16384")
e("  s_add_u32 s22, s20, 32768")
e("  s_mul_i32 s23, s2, %d" % (CH * 2))
e("  s_add_u32 s24, s23, 8192")
e("  s_add_u32 s25, s23, 16384")
e("  s_mov_b32 s6, %d" % (NWG * CH * 4))
e("  s_mov_b32 s7, 0x20000")
e("  s_mov_b32 s10, %d" % (NWG * CH * 4))
e("  s_mov_b32 s11, 0x20000")
e("  s_mov_b32 s14, %d" % (NWG * CH * 2))
e("  s_mov_b32 s15, 0x20000")
e("  s_mov_b32 s18, %d" % WS_SIZE)
e("  s_mov_b32 s19, 0x20000")
e("  s_mov_b32 s27, %d" % (-BINW & 0xFFFFFFFF))
e("  s_mov_b32 s28, 0x3e22f900")
e("  s_mov_b32 s29, 0x36036e4e")
e("  v_cmp_gt_u32 vcc, 0x100, v0")
e("  s_and_saveexec_b64 s[32:33], vcc")
e("  ds_write_b32 v3, v70 offset:%d" % CNT)
e("  s_mov_b64 exec, s[32:33]")
e("  s_waitcnt lgkmcnt(0)")
O = [4 + j for j in range(10)]
I = [14 + j for j in range(10)]
N = [24 + j for j in range(5)]
H = [30 + j for j in range(10)]
D = [40 + j for j in range(10)]
R = [50 + j for j in range(10)]
F = [60 + j for j in range(10)]
e("  buffer_load_dwordx4 v[4:7], v1, s[8:11], s20 offen" + LDNT)
e("  buffer_load_dwordx4 v[8:11], v1, s[8:11], s21 offen" + LDNT)
e("  buffer_load_dwordx2 v[12:13], v2, s[8:11], s22 offen" + LDNT)
e("  buffer_load_dwordx4 v[14:17], v1, s[4:7], s20 offen" + LDNT)
e("  buffer_load_dwordx2 v[24:25], v2, s[12:15], s23 offen" + LDNT)
e("  buffer_load_dwordx4 v[18:21], v1, s[4:7], s21 offen" + LDNT)
e("  buffer_load_dwordx2 v[26:27], v2, s[12:15], s24 offen" + LDNT)
e("  buffer_load_dwordx2 v[22:23], v2, s[4:7], s22 offen" + LDNT)
e("  buffer_load_dword v28, v3, s[12:15], s25 offen" + LDNT)
e("  s_load_dword s26, s[30:31], 0")
e("  s_waitcnt lgkmcnt(0)")
e("  s_lshl_b32 s26, s26, 16")
e("  s_barrier")
stamp(1)

def hist(js):
    for j in js:
        e("  v_lshrrev_b32 v%d, 7, v%d" % (F[j], O[j]))
    for j in js:
        e("  v_mul_u32_u24 v%d, 0xcccd, v%d" % (F[j], F[j]))
    for j in js:
        e("  v_lshrrev_b32 v%d, 18, v%d" % (F[j], F[j]))
    for j in js:
        e("  v_lshlrev_b32 v%d, 2, v%d" % (H[j], F[j]))
    for j in js:
        e("  ds_add_rtn_u32 v%d, v%d, v90 offset:%d" % (R[j], H[j], CNT))
    for j in js:
        e("  v_mad_i32_i24 v%d, v%d, s27, v%d" % (D[j], F[j], O[j]))

e("  s_waitcnt vmcnt(8)")
hist([0, 1, 2, 3])
e("  s_waitcnt vmcnt(7)")
hist([4, 5, 6, 7])
e("  s_waitcnt vmcnt(6)")
hist([8, 9])
e("  s_waitcnt lgkmcnt(0)")
e("  s_barrier")
stamp(2)
e("  v_and_b32 v71, 63, v0")
e("  v_lshlrev_b32 v72, 4, v71")
e("  ds_read_b128 v[74:77], v72 offset:%d" % CNT)
e("  s_waitcnt lgkmcnt(0)")
e("  v_add_u32 v79, v74, v75")
e("  v_add_u32 v80, v79, v76")
e("  v_add_u32 v81, v80, v77")
e("  v_mov_b32 v82, v81")
for sh in (1, 2, 4, 8):
    e("  s_nop 1")
    e("  v_add_u32_dpp v82, v82, v82 row_shr:%d row_mask:0xf bank_mask:0xf bound_ctrl:0" % sh)
e("  s_nop 1")
e("  v_add_u32_dpp v82, v82, v82 row_bcast:15 row_mask:0xa bank_mask:0xf")
e("  s_nop 1")
e("  v_add_u32_dpp v82, v82, v82 row_bcast:31 row_mask:0xc bank_mask:0xf")
e("  v_sub_u32 v84, v82, v81")
e("  v_add_u32 v85, v84, v74")
e("  v_add_u32 v86, v84, v79")
e("  v_add_u32 v87, v84, v80")
e("  ds_write_b128 v72, v[84:87] offset:%d" % OFF)
e("  s_waitcnt lgkmcnt(0)")
for j in range(10):
    e("  ds_read_b32 v%d, v%d offset:%d" % (F[j], H[j], OFF))
for k in range(4):
    e("  v_lshl_or_b32 v%d, v%d, 16, v%d" % (74 + k, 74 + k, 84 + k))
e("  s_waitcnt lgkmcnt(0)")
for j in range(10):
    e("  v_add_u32 v%d, v%d, v%d" % (R[j], R[j], F[j]))

def place(js, nregs):
    for j in js:
        e("  v_lshlrev_b32 v%d, 3, v%d" % (I[j], I[j]))
    for j in js:
        e("  v_lshl_or_b32 v%d, v%d, 21, v%d" % (I[j], D[j], I[j]))
    for j in js:
        e("  v_lshlrev_b32 v%d, 2, v%d" % (H[j], R[j]))
    for j in js:
        e("  ds_write_b32 v%d, v%d offset:%d" % (H[j], I[j], PA))
    np_ = len(nregs)
    X0 = [F[js[2 * p]] for p in range(np_)]
    X1 = [F[js[2 * p + 1]] for p in range(np_)]
    Q0 = [O[js[2 * p]] for p in range(np_)]
    Q1 = [O[js[2 * p + 1]] for p in range(np_)]
    for p in range(np_):
        e("  v_lshlrev_b32 v%d, 16, v%d" % (X0[p], nregs[p]))
        e("  v_and_b32 v%d, 0xffff0000, v%d" % (X1[p], nregs[p]))
    for p in range(np_):
        e("  v_mul_f32 v%d, s26, v%d" % (X0[p], X0[p]))
        e("  v_mul_f32 v%d, s26, v%d" % (X1[p], X1[p]))
    for p in range(np_):
        e("  v_cvt_pk_bf16_f32 v%d, v%d, v%d" % (nregs[p], X0[p], X1[p]))
    for p in range(np_):
        e("  v_lshlrev_b32 v%d, 16, v%d" % (X0[p], nregs[p]))
        e("  v_and_b32 v%d, 0xffff0000, v%d" % (X1[p], nregs[p]))
    for p in range(np_):
        e("  v_mul_f32 v%d, s28, v%d" % (Q0[p], X0[p]))
        e("  v_mul_f32 v%d, s28, v%d" % (Q1[p], X1[p]))
    for p in range(np_):
        e("  v_fract_f32 v%d, v%d" % (Q0[p], Q0[p]))
        e("  v_fract_f32 v%d, v%d" % (Q1[p], Q1[p]))
    for p in range(np_):
        e("  v_fma_f32 v%d, v%d, s29, v%d" % (Q0[p], X0[p], Q0[p]))
        e("  v_fma_f32 v%d, v%d, s29, v%d" % (Q1[p], X1[p], Q1[p]))
    for p in range(np_):
        e("  v_cos_f32 v%d, v%d" % (Q0[p], Q0[p]))
        e("  v_cos_f32 v%d, v%d" % (Q1[p], Q1[p]))
    for j in js:
        e("  v_lshlrev_b32 v%d, 1, v%d" % (H[j], R[j]))
    for p in range(np_):
        e("  v_cvt_pk_bf16_f32 v%d, v%d, v%d" % (nregs[p], Q0[p], Q1[p]))
    for p in range(np_):
        e("  ds_write_b16 v%d, v%d offset:%d" % (H[js[2 * p]], nregs[p], PC))
        e("  ds_write_b16_d16_hi v%d, v%d offset:%d" % (H[js[2 * p + 1]], nregs[p], PC))

stamp(3)
e("  s_waitcnt vmcnt(4)")
place([0, 1, 2, 3], [24, 25])
e("  s_waitcnt vmcnt(2)")
place([4, 5, 6, 7], [26, 27])
e("  s_waitcnt vmcnt(0)")
place([8, 9], [28])
e("  v_lshrrev_b32 v91, 6, v0")
e("  s_waitcnt lgkmcnt(0)")
e("  v_readfirstlane_b32 s34, v91")
e("  s_barrier")
stamp(4)
e("  ds_read_b128 v[4:7], v1 offset:%d" % PA)
e("  ds_read_b128 v[8:11], v1 offset:%d" % (PA + 16384))
e("  ds_read_b128 v[12:15], v1 offset:%d" % (PA + 32768))
e("  ds_read_b128 v[16:19], v1 offset:%d" % (PA + 49152))
e("  s_add_u32 s35, s20, %d" % WS_A)
e("  s_add_u32 s36, s21, %d" % WS_A)
e("  s_add_u32 s37, s22, %d" % WS_A)
e("  s_add_u32 s38, s23, %d" % (WS_C - 8192))
e("  s_cmp_lt_u32 s34, 8")
e("  s_cselect_b32 s37, s37, s38")
e("  s_add_u32 s38, s23, %d" % (WS_C + 8192))
e("  s_waitcnt lgkmcnt(3)")
e("  buffer_store_dwordx4 v[4:7], v1, s[16:19], s35 offen" + ST)
e("  s_waitcnt lgkmcnt(2)")
e("  buffer_store_dwordx4 v[8:11], v1, s[16:19], s36 offen" + ST)
e("  s_waitcnt lgkmcnt(1)")
e("  buffer_store_dwordx4 v[12:15], v1, s[16:19], s37 offen" + ST)
e("  s_waitcnt lgkmcnt(0)")
e("  s_cmp_ge_u32 s34, 12")
e("  s_cbranch_scc1 L_p1_fin")
e("  buffer_store_dwordx4 v[16:19], v1, s[16:19], s38 offen" + ST)
e("  s_cmp_ge_u32 s34, 4")
e("  s_cbranch_scc1 L_p1_fin")
e("  s_lshl_b32 s39, s34, 10")
e("  s_lshl_b32 s40, s2, 2")
e("  s_add_u32 s39, s39, s40")
e("  s_add_u32 s39, s39, %d" % WS_T)
e("  v_lshlrev_b32 v72, 12, v71")
e("  s_cmp_eq_u32 s34, 0")
e("  s_cbranch_scc1 L_p1_t0")
e("  s_cmp_eq_u32 s34, 1")
e("  s_cbranch_scc1 L_p1_t1")
e("  s_cmp_eq_u32 s34, 2")
e("  s_cbranch_scc1 L_p1_t2")
e("  buffer_store_dword v77, v72, s[16:19], s39 offen" + ST)
e("  s_branch L_p1_fin")
e("L_p1_t0:")
e("  buffer_store_dword v74, v72, s[16:19], s39 offen" + ST)
e("  s_branch L_p1_fin")
e("L_p1_t1:")
e("  buffer_store_dword v75, v72, s[16:19], s39 offen" + ST)
e("  s_branch L_p1_fin")
e("L_p1_t2:")
e("  buffer_store_dword v76, v72, s[16:19], s39 offen" + ST)
e("L_p1_fin:")
stamp(5)
if STAMP:
    e("  s_waitcnt vmcnt(0)")
stamp(6)
stamp_flush("s[16:19]", 0)
e("L_p1_end:")
e("  s_endpgm")

K2 = "gs_acc_kernel"
e(".globl %s" % K2)
e(".p2align 8")
e(".type %s,@function" % K2)
e("%s:" % K2)
e("  s_cmp_ge_u32 s2, %d" % NWG)
e("  s_cbranch_scc1 L_p2_end")
stamp(0)
e("  s_load_dwordx2 s[4:5], s[0:1], 0")
e("  s_load_dwordx2 s[8:9], s[0:1], 24")
e("  s_load_dwordx2 s[12:13], s[0:1], 104")
e("  s_load_dwordx2 s[16:17], s[0:1], 88")
e("  s_load_dwordx4 s[20:23], s[0:1], 56")
e("  s_load_dwordx4 s[24:27], s[0:1], 72")
e("  s_load_dwordx2 s[28:29], s[0:1], 40")
VL, VU, VT, VN, VDONE = 1, 2, 3, 4, 5
e("  v_and_b32 v1, 63, v0")
e("  v_lshrrev_b32 v6, 6, v0")
e("  s_mov_b32 s6, 1280000")
e("  s_mov_b32 s7, 0x20000")
e("  s_mov_b32 s10, 320000")
e("  s_mov_b32 s11, 0x20000")
e("  s_mov_b32 s14, %d" % WS_SIZE)
e("  s_mov_b32 s15, 0x20000")
e("  s_mov_b32 s18, 1280000")
e("  s_mov_b32 s19, 0x20000")
e("  v_readfirstlane_b32 s30, v6")
e("  s_mul_i32 s31, s2, %d" % BINW)
e("  s_lshl_b32 s32, s2, 10")
e("  s_add_u32 s32, s32, %d" % WS_T)
e("  s_mov_b32 s33, %d" % WS_C)
e("  v_mov_b32 v8, 0")
e("  v_mov_b32 v9, 0")
e("  v_mov_b32 v10, 0")
e("  v_mov_b32 v11, 0")
e("  v_lshlrev_b32 v7, 4, v0")
e("  ds_write_b128 v7, v[8:11]")
e("  v_cmp_gt_u32 vcc, 0x100, v0")
e("  s_and_saveexec_b64 s[34:35], vcc")
e("  ds_write_b128 v7, v[8:11] offset:16384")
e("  s_mov_b64 exec, s[34:35]")
e("  v_add_u32 v92, s31, v0")
e("  v_lshlrev_b32 v93, 1, v92")
e("  v_lshlrev_b32 v92, 3, v92")
e("  s_lshl_b32 s36, s30, 4")
e("  v_add_u32 v6, s36, v1")
e("  v_lshlrev_b32 v7, 2, v6")
e("  s_waitcnt lgkmcnt(0)")
e("  buffer_load_dword v2, v7, s[12:15], s32 offen")
e("  buffer_load_ushort v94, v93, s[8:11], 0 offen")
e("  buffer_load_dwordx2 v[96:97], v92, s[4:7], 0 offen")
e("  s_waitcnt vmcnt(2)")
stamp(1)
e("  v_lshrrev_b32 v4, 16, v2")
e("  v_and_b32 v2, 0xffff, v2")
e("  s_mov_b32 s37, %d" % CH)
e("  v_mad_u32_u24 v2, v6, s37, v2")
e("  v_cmp_gt_u32 vcc, %d, v6" % NWG)
e("  v_cmp_gt_u32 s[38:39], 16, v1")
e("  s_and_b64 vcc, vcc, s[38:39]")
e("  v_cndmask_b32 v4, 0, v4, vcc")
e("  v_cndmask_b32 v2, 0, v2, vcc")
e("  v_min_u32 v5, 64, v4")
e("  v_cmp_lt_u32 vcc, 64, v4")
e("  s_mov_b32 s40, 0")
e("  s_mov_b32 s41, 0")
e("  s_cbranch_vccz L_p2_nolong")
e("  s_ff1_i32_b64 s42, vcc")
e("  v_readlane_b32 s40, v2, s42")
e("  v_readlane_b32 s41, v4, s42")
e("  s_add_u32 s40, s40, 64")
e("  s_sub_u32 s41, s41, 64")
e("  s_min_u32 s41, s41, 64")
e("  s_add_u32 s43, s41, 64")
e("  s_mov_b32 m0, s42")
e("  v_writelane_b32 v5, s43, m0")
e("L_p2_nolong:")
e("  v_min_u32 v3, 64, v4")
e("  v_writelane_b32 v2, s40, 16")
e("  v_writelane_b32 v3, s41, 16")
e("  v_sub_u32 v3, 64, v3")
e("  v_mov_b32 v9, v2")
NP = 17
A = [10 + s for s in range(NP)]
C = [27 + s for s in range(NP)]
G = [44 + 2 * s for s in range(NP)]
ST_ = [44 + s for s in range(NP)]
for s in range(NP):
    e("  v_readlane_b32 s61, v2, %d" % s)
    e("  v_readlane_b32 s%d, v3, %d" % (ST_[s], s))
    e("  s_min_u32 s62, s%d, 63" % ST_[s])
    e("  s_lshr_b64 exec, -1, s62")
    ta, tc = (78, 79) if s % 2 == 0 else (80, 81)
    e("  v_add_lshl_u32 v%d, s61, v1, 2" % ta)
    e("  v_add_lshl_u32 v%d, s61, v1, 1" % tc)
    e("  buffer_load_dword v%d, v%d, s[12:15], 0 offen" % (A[s], ta))
    e("  buffer_load_ushort v%d, v%d, s[12:15], s33 offen" % (C[s], tc))
e("  s_mov_b64 exec, -1")
e("  s_barrier")
stamp(2)
for s in range(NP):
    e("  s_waitcnt vmcnt(%d)" % (2 * NP - 1 - s))
    e("  s_min_u32 s62, s%d, 63" % ST_[s])
    e("  s_lshr_b64 exec, -1, s62")
    ta = 78 + (s % 4)
    e("  v_and_b32 v%d, 0x1fffff, v%d" % (ta, A[s]))
    e("  buffer_load_dwordx2 v[%d:%d], v%d, s[4:7], 0 offen" % (G[s], G[s] + 1, ta))
e("  s_mov_b64 exec, -1")
stamp(3)
S = [98, 99, 100, 101]
Rr = [102, 103, 104, 105]
e("  s_cmp_ge_u32 s30, 10")
e("  s_cbranch_scc1 L_p2_nopre")
e("  s_load_dwordx4 s[64:67], s[28:29], 0")
e("  s_load_dwordx16 s[68:83], s[22:23], 0")
e("  s_load_dwordx16 s[84:99], s[20:21], 0")
e("  v_lshlrev_b32 v94, 16, v94")
e("  s_mov_b32 s61, 0xc1200000")
e("  s_mov_b32 s62, 0x3fb8aa3b")
e("  s_waitcnt lgkmcnt(0)")
RB = [106 + n for n in range(8)]
for p in range(4):
    a, b = RB[2 * p], RB[2 * p + 1]
    e("  s_lshl_b32 s63, s%d, 16" % (64 + p))
    e("  s_and_b32 s40, s%d, 0xffff0000" % (64 + p))
    e("  v_subrev_f32 v%d, s63, v94" % a)
    e("  v_subrev_f32 v%d, s40, v94" % b)
    def rnd():
        e("  v_cvt_pk_bf16_f32 v78, v%d, v%d" % (a, b))
        e("  v_lshlrev_b32 v%d, 16, v78" % a)
        e("  v_and_b32 v%d, 0xffff0000, v78" % b)
    rnd()
    e("  v_mul_f32 v%d, v%d, v%d" % (a, a, a))
    e("  v_mul_f32 v%d, v%d, v%d" % (b, b, b))
    rnd()
    e("  v_mul_f32 v%d, s61, v%d" % (a, a))
    e("  v_mul_f32 v%d, s61, v%d" % (b, b))
    rnd()
    e("  v_mul_f32 v%d, s62, v%d" % (a, a))
    e("  v_mul_f32 v%d, s62, v%d" % (b, b))
    e("  v_exp_f32 v%d, v%d" % (a, a))
    e("  v_exp_f32 v%d, v%d" % (b, b))
    e("  s_nop 0")
    rnd()
def matvec(dst, src, wbase, nrows):
    for n in range(nrows):
        for k in range(4):
            dw = wbase + 2 * n + (k >> 1)
            tmp = 40 + (k & 3)
            if k & 1:
                e("  s_and_b32 s%d, s%d, 0xffff0000" % (tmp, dw))
            else:
                e("  s_lshl_b32 s%d, s%d, 16" % (tmp, dw))
        for k in range(4):
            tmp = 40 + (k & 3)
            if n == 0:
                e("  v_mul_f32 v%d, s%d, v%d" % (dst[k], tmp, src[n]))
            else:
                e("  v_fmac_f32 v%d, s%d, v%d" % (dst[k], tmp, src[n]))
matvec(S, RB, 68, 8)
matvec(Rr, RB, 84, 8)
e("L_p2_nopre:")
stamp(4)

def accumulate(a, c, g):
    e("  v_lshlrev_b32 v78, 16, v%d" % g)
    e("  v_and_b32 v80, 0xffff0000, v%d" % g)
    e("  v_lshlrev_b32 v82, 16, v%d" % (g + 1))
    e("  v_and_b32 v84, 0xffff0000, v%d" % (g + 1))
    e("  v_lshlrev_b32 v86, 16, v%d" % c)
    e("  v_lshrrev_b32 v87, 18, v%d" % a)
    e("  v_mul_f32 v78, v86, v78")
    e("  v_mul_f32 v80, v86, v80")
    e("  v_mul_f32 v82, v86, v82")
    e("  v_mul_f32 v84, v86, v84")
    e("  v_and_b32 v87, 0x1ff8, v87")
    e("  v_cvt_f64_f32 v[78:79], v78")
    e("  v_cvt_f64_f32 v[80:81], v80")
    e("  v_cvt_f64_f32 v[82:83], v82")
    e("  v_cvt_f64_f32 v[84:85], v84")
    e("  ds_add_f64 v87, v[78:79]")
    e("  ds_add_f64 v87, v[80:81] offset:%d" % (BINW * 8))
    e("  ds_add_f64 v87, v[82:83] offset:%d" % (BINW * 16))
    e("  ds_add_f64 v87, v[84:85] offset:%d" % (BINW * 24))

for s in range(NP):
    e("  s_waitcnt vmcnt(%d)" % (NP - 1 - s))
    e("  s_cmp_eq_u32 s%d, 64" % ST_[s])
    e("  s_cbranch_scc1 L_p2_skip%d" % s)
    e("  s_lshr_b64 exec, -1, s%d" % ST_[s])
    accumulate(A[s], C[s], G[s])
    e("L_p2_skip%d:" % s)
e("  s_mov_b64 exec, -1")
e("L_p2_left:")
e("  v_cmp_gt_u32 vcc, v4, v5")
e("  s_cbranch_vccz L_p2_leftdone")
e("  s_ff1_i32_b64 s42, vcc")
e("  v_readlane_b32 s40, v9, s42")
e("  v_readlane_b32 s41, v4, s42")
e("  v_readlane_b32 s43, v5, s42")
e("  s_add_u32 s40, s40, s43")
e("  s_sub_u32 s41, s41, s43")
e("  s_min_u32 s41, s41, 64")
e("  s_add_u32 s43, s43, s41")
e("  s_mov_b32 m0, s42")
e("  v_writelane_b32 v5, s43, m0")
e("  s_sub_u32 s41, 64, s41")
e("  s_lshr_b64 exec, -1, s41")
e("  v_add_lshl_u32 v78, s40, v1, 2")
e("  v_add_lshl_u32 v79, s40, v1, 1")
e("  buffer_load_dword v10, v78, s[12:15], 0 offen")
e("  buffer_load_ushort v27, v79, s[12:15], s33 offen")
e("  s_waitcnt vmcnt(0)")
e("  v_and_b32 v78, 0x1fffff, v10")
e("  buffer_load_dwordx2 v[44:45], v78, s[4:7], 0 offen")
e("  s_waitcnt vmcnt(0)")
accumulate(10, 27, 44)
e("  s_mov_b64 exec, -1")
e("  s_branch L_p2_left")
e("L_p2_leftdone:")
e("  s_waitcnt lgkmcnt(0)")
stamp(5)
e("  s_barrier")
e("  s_cmp_ge_u32 s30, 10")
e("  s_cbranch_scc1 L_p2_fin")
e("  v_lshlrev_b32 v7, 3, v0")
e("  s_load_dwordx8 s[64:71], s[24:25], 0")
e("  s_load_dwordx8 s[72:79], s[26:27], 0")
e("  ds_read_b64 v[10:11], v7")
e("  ds_read_b64 v[12:13], v7 offset:%d" % (BINW * 8))
e("  ds_read_b64 v[14:15], v7 offset:%d" % (BINW * 16))
e("  ds_read_b64 v[16:17], v7 offset:%d" % (BINW * 24))
e("  s_waitcnt lgkmcnt(0)")
e("  v_cvt_f32_f64 v20, v[10:11]")
e("  v_cvt_f32_f64 v21, v[12:13]")
e("  v_cvt_f32_f64 v22, v[14:15]")
e("  v_cvt_f32_f64 v23, v[16:17]")
matvec([24, 25, 26, 27], [20, 21, 22, 23], 64, 4)
for k in range(4):
    e("  v_mul_f32 v%d, v%d, v%d" % (24 + k, 24 + k, S[k]))
matvec([28, 29, 30, 31], [24, 25, 26, 27], 72, 4)
e("  v_lshlrev_b32 v32, 16, v96")
e("  v_and_b32 v33, 0xffff0000, v96")
e("  v_lshlrev_b32 v34, 16, v97")
e("  v_and_b32 v35, 0xffff0000, v97")
for k in range(4):
    e("  v_fmac_f32 v%d, v%d, v%d" % (32 + k, 28 + k, Rr[k]))
e("  v_cvt_pk_bf16_f32 v36, v32, v33")
e("  v_cvt_pk_bf16_f32 v37, v34, v35")
e("  buffer_store_dwordx2 v[36:37], v92, s[16:19], 0 offen")
e("L_p2_fin:")
if STAMP:
    e("  s_waitcnt vmcnt(0)")
    stamp(6)
    stamp_flush("s[12:15]", 1)
e("L_p2_end:")
e("  s_endpgm")

e('.section .rodata,"a"')
for k, nv in ((K1, 124 if STAMP else 92), (K2, 124 if STAMP else 114)):
    e(".p2align 6")
    e(".amdhsa_kernel %s" % k)
    e("  .amdhsa_next_free_vgpr %d" % nv)
    e("  .amdhsa_next_free_sgpr 102")
    e("  .amdhsa_accum_offset %d" % ((nv + 3) // 4 * 4))
    e("  .amdhsa_group_segment_fixed_size 0")
    e("  .amdhsa_kernarg_size 112")
    e("  .amdhsa_user_sgpr_count 2")
    e("  .amdhsa_user_sgpr_kernarg_segment_ptr 1")
    e("  .amdhsa_system_sgpr_workgroup_id_x 1")
    e("  .amdhsa_float_denorm_mode_32 3")
    e(".end_amdhsa_kernel")

open(sys.argv[1], "w").write("\n".join(out) + "\n")
```

```python
import sys

NAME = "gather_scatter__molecular_angular_gemnet__graph"
NWG = 250
CH = 10240
BINW = 640
WS_A = 0
WS_C = NWG * CH * 4
WS_T = WS_C + NWG * CH * 2
WS_SIZE = 268435456

out = []
def e(s=""):
    out.append(s)

opts = dict(st="sc1", ldnt="nt", stamp="0", xcd="1", pref="1", ofirst="1", dedupe="1", cap="26")
for a in sys.argv[2:]:
    k, v = a.split("=")
    opts[k] = v
ST = "" if opts["st"] == "plain" else " " + opts["st"].replace("+", " ")
LDNT = "" if opts["ldnt"] == "plain" else " " + opts["ldnt"]
STAMP = opts["stamp"] == "1"
STAMP_OFF = 0x4000000

def stamp(k):
    if not STAMP:
        return
    e("  s_memrealtime s[100:101]")
    e("  s_waitcnt lgkmcnt(0)")
    e("  v_writelane_b32 v120, s100, %d" % (2 * k))
    e("  v_writelane_b32 v120, s101, %d" % (2 * k + 1))

def stamp_flush(srd, launch):
    if not STAMP:
        return
    e("  s_mov_b64 exec, -1")
    e("  v_and_b32 v121, 63, v0")
    e("  v_lshlrev_b32 v121, 2, v121")
    e("  v_lshrrev_b32 v122, 6, v0")
    e("  v_lshlrev_b32 v122, 7, v122")
    e("  v_add_u32 v121, v121, v122")
    e("  s_lshl_b32 s100, s2, 11")
    e("  s_add_u32 s100, s100, %d" % (STAMP_OFF + launch * 256 * 2048))
    e("  s_mov_b64 exec, 0xffffffff")
    e("  buffer_store_dword v120, v121, %s, s100 offen" % srd)

header = open("cdna_kernels/%s.s.ref" % NAME).read().split("\n")
for line in header:
    if line.startswith("; Override launch") or line.startswith("; grid=ceil") or "@launch" in line:
        continue
    if line.startswith(";"):
        e(line)
    else:
        break

CAP = int(opts["cap"])
NGRP = 625
NSLOT = 16384
ACC = 0
CNT1 = ACC + 4 * BINW * 8
FLAGS = CNT1 + 2560
BUCKET = FLAGS + 64
SPILL0 = NGRP * CAP
SPILLN = NSLOT - SPILL0
assert SPILLN > 0
P2_LDS = BUCKET + NSLOT * 8 + 16
P1_LDS = 2048 + CH * 4 + CH * 2
e("; Two launches: bin the triplets by destination range, then accumulate per range.")
e("; @launch kernel=%s_kernel grid=(%d,1,1) block=(1024,1,1) lds=%d" % (NAME, NWG, P1_LDS))
e("; @launch kernel=gs_acc_kernel grid=(%d,1,1) block=(1024,1,1) lds=%d" % (NWG, P2_LDS))
e('.amdgcn_target "amdgcn-amd-amdhsa--gfx950"')
e(".text")

CNT, OFF, PA = 0, 1024, 2048
PC = PA + CH * 4
K1 = NAME + "_kernel"
e(".globl %s" % K1)
e(".p2align 8")
e(".type %s,@function" % K1)
e("%s:" % K1)
e("  s_cmp_ge_u32 s2, %d" % NWG)
e("  s_cbranch_scc1 L_p1_end")
stamp(0)
e("  s_load_dwordx2 s[4:5], s[0:1], 8")
e("  s_load_dwordx2 s[8:9], s[0:1], 16")
e("  s_load_dwordx2 s[12:13], s[0:1], 32")
e("  s_load_dwordx2 s[30:31], s[0:1], 48")
e("  s_load_dwordx2 s[16:17], s[0:1], 104")
e("  s_load_dwordx2 s[44:45], s[0:1], 0")
e("  v_lshlrev_b32 v1, 4, v0")
e("  v_lshlrev_b32 v2, 3, v0")
e("  v_lshlrev_b32 v3, 2, v0")
e("  v_mov_b32 v90, 1")
e("  v_mov_b32 v70, 0")
e("  s_mul_i32 s20, s2, %d" % (CH * 4))
e("  s_add_u32 s21, s20, 16384")
e("  s_add_u32 s22, s20, 32768")
e("  s_mul_i32 s23, s2, %d" % (CH * 2))
e("  s_add_u32 s24, s23, 8192")
e("  s_add_u32 s25, s23, 16384")
e("  s_mov_b32 s6, %d" % (NWG * CH * 4))
e("  s_mov_b32 s7, 0x20000")
e("  s_mov_b32 s10, %d" % (NWG * CH * 4))
e("  s_mov_b32 s11, 0x20000")
e("  s_mov_b32 s14, %d" % (NWG * CH * 2))
e("  s_mov_b32 s15, 0x20000")
e("  s_mov_b32 s18, %d" % WS_SIZE)
e("  s_mov_b32 s19, 0x20000")
e("  s_mov_b32 s46, 1280000")
e("  s_mov_b32 s47, 0x20000")
e("  s_mov_b32 s27, %d" % (-BINW & 0xFFFFFFFF))
e("  s_mov_b32 s28, 0x3e22f900")
e("  s_mov_b32 s29, 0x36036e4e")
e("  s_lshr_b32 s48, s2, 3")
e("  s_mul_i32 s48, s48, 41472")
e("  s_add_u32 s49, s48, 16384")
e("  s_add_u32 s50, s48, 32768")
e("  v_cmp_gt_u32 vcc, 0x100, v0")
e("  s_and_saveexec_b64 s[32:33], vcc")
e("  ds_write_b32 v3, v70 offset:%d" % CNT)
e("  s_mov_b64 exec, s[32:33]")
e("  s_waitcnt lgkmcnt(0)")
O = [4 + j for j in range(10)]
I = [14 + j for j in range(10)]
N = [24 + j for j in range(5)]
H = [30 + j for j in range(10)]
D = [40 + j for j in range(10)]
R = [50 + j for j in range(10)]
F = [60 + j for j in range(10)]
e("  buffer_load_dwordx4 v[4:7], v1, s[8:11], s20 offen" + LDNT)
e("  buffer_load_dwordx4 v[8:11], v1, s[8:11], s21 offen" + LDNT)
e("  buffer_load_dwordx2 v[12:13], v2, s[8:11], s22 offen" + LDNT)
if opts["ofirst"] == "1":
    e("  s_load_dword s26, s[30:31], 0")
    e("  s_barrier")
e("  buffer_load_dwordx4 v[14:17], v1, s[4:7], s20 offen" + LDNT)
e("  buffer_load_dwordx2 v[24:25], v2, s[12:15], s23 offen" + LDNT)
e("  buffer_load_dwordx4 v[18:21], v1, s[4:7], s21 offen" + LDNT)
e("  buffer_load_dwordx2 v[26:27], v2, s[12:15], s24 offen" + LDNT)
e("  buffer_load_dwordx2 v[22:23], v2, s[4:7], s22 offen" + LDNT)
e("  buffer_load_dword v28, v3, s[12:15], s25 offen" + LDNT)
if opts["ofirst"] != "1":
    e("  s_load_dword s26, s[30:31], 0")
    e("  s_waitcnt lgkmcnt(0)")
    e("  s_lshl_b32 s26, s26, 16")
    e("  s_barrier")
else:
    e("  s_waitcnt lgkmcnt(0)")
    e("  s_lshl_b32 s26, s26, 16")
stamp(1)

def hist(js):
    for j in js:
        e("  v_lshrrev_b32 v%d, 7, v%d" % (F[j], O[j]))
    for j in js:
        e("  v_mul_u32_u24 v%d, 0xcccd, v%d" % (F[j], F[j]))
    for j in js:
        e("  v_lshrrev_b32 v%d, 18, v%d" % (F[j], F[j]))
    for j in js:
        e("  v_lshlrev_b32 v%d, 2, v%d" % (H[j], F[j]))
    for j in js:
        e("  ds_add_rtn_u32 v%d, v%d, v90 offset:%d" % (R[j], H[j], CNT))
    for j in js:
        e("  v_mad_i32_i24 v%d, v%d, s27, v%d" % (D[j], F[j], O[j]))

e("  s_waitcnt vmcnt(8)")
hist([0, 1, 2, 3])
e("  s_waitcnt vmcnt(7)")
hist([4, 5, 6, 7])
e("  s_waitcnt vmcnt(6)")
hist([8, 9])
e("  s_waitcnt lgkmcnt(0)")
e("  s_barrier")
stamp(2)
e("  v_and_b32 v71, 63, v0")
e("  v_lshlrev_b32 v72, 4, v71")
e("  ds_read_b128 v[74:77], v72 offset:%d" % CNT)
e("  s_waitcnt lgkmcnt(0)")
e("  v_add_u32 v79, v74, v75")
e("  v_add_u32 v80, v79, v76")
e("  v_add_u32 v81, v80, v77")
e("  v_mov_b32 v82, v81")
for sh in (1, 2, 4, 8):
    e("  s_nop 1")
    e("  v_add_u32_dpp v82, v82, v82 row_shr:%d row_mask:0xf bank_mask:0xf bound_ctrl:0" % sh)
e("  s_nop 1")
e("  v_add_u32_dpp v82, v82, v82 row_bcast:15 row_mask:0xa bank_mask:0xf")
e("  s_nop 1")
e("  v_add_u32_dpp v82, v82, v82 row_bcast:31 row_mask:0xc bank_mask:0xf")
e("  v_sub_u32 v84, v82, v81")
e("  v_add_u32 v85, v84, v74")
e("  v_add_u32 v86, v84, v79")
e("  v_add_u32 v87, v84, v80")
e("  ds_write_b128 v72, v[84:87] offset:%d" % OFF)
e("  s_waitcnt lgkmcnt(0)")
for j in range(10):
    e("  ds_read_b32 v%d, v%d offset:%d" % (F[j], H[j], OFF))
for k in range(4):
    e("  v_lshl_or_b32 v%d, v%d, 16, v%d" % (74 + k, 74 + k, 84 + k))
e("  s_waitcnt lgkmcnt(0)")
for j in range(10):
    e("  v_add_u32 v%d, v%d, v%d" % (R[j], R[j], F[j]))

def place(js, nregs):
    for j in js:
        e("  v_lshlrev_b32 v%d, 3, v%d" % (I[j], I[j]))
    for j in js:
        e("  v_lshl_or_b32 v%d, v%d, 21, v%d" % (I[j], D[j], I[j]))
    for j in js:
        e("  v_lshlrev_b32 v%d, 2, v%d" % (H[j], R[j]))
    for j in js:
        e("  ds_write_b32 v%d, v%d offset:%d" % (H[j], I[j], PA))
    np_ = len(nregs)
    X0 = [F[js[2 * p]] for p in range(np_)]
    X1 = [F[js[2 * p + 1]] for p in range(np_)]
    Q0 = [O[js[2 * p]] for p in range(np_)]
    Q1 = [O[js[2 * p + 1]] for p in range(np_)]
    for p in range(np_):
        e("  v_lshlrev_b32 v%d, 16, v%d" % (X0[p], nregs[p]))
        e("  v_and_b32 v%d, 0xffff0000, v%d" % (X1[p], nregs[p]))
    for p in range(np_):
        e("  v_mul_f32 v%d, s26, v%d" % (X0[p], X0[p]))
        e("  v_mul_f32 v%d, s26, v%d" % (X1[p], X1[p]))
    for p in range(np_):
        e("  v_cvt_pk_bf16_f32 v%d, v%d, v%d" % (nregs[p], X0[p], X1[p]))
    for p in range(np_):
        e("  v_lshlrev_b32 v%d, 16, v%d" % (X0[p], nregs[p]))
        e("  v_and_b32 v%d, 0xffff0000, v%d" % (X1[p], nregs[p]))
    for p in range(np_):
        e("  v_mul_f32 v%d, s28, v%d" % (Q0[p], X0[p]))
        e("  v_mul_f32 v%d, s28, v%d" % (Q1[p], X1[p]))
    for p in range(np_):
        e("  v_fract_f32 v%d, v%d" % (Q0[p], Q0[p]))
        e("  v_fract_f32 v%d, v%d" % (Q1[p], Q1[p]))
    for p in range(np_):
        e("  v_fma_f32 v%d, v%d, s29, v%d" % (Q0[p], X0[p], Q0[p]))
        e("  v_fma_f32 v%d, v%d, s29, v%d" % (Q1[p], X1[p], Q1[p]))
    for p in range(np_):
        e("  v_cos_f32 v%d, v%d" % (Q0[p], Q0[p]))
        e("  v_cos_f32 v%d, v%d" % (Q1[p], Q1[p]))
    for j in js:
        e("  v_lshlrev_b32 v%d, 1, v%d" % (H[j], R[j]))
    for p in range(np_):
        e("  v_cvt_pk_bf16_f32 v%d, v%d, v%d" % (nregs[p], Q0[p], Q1[p]))
    for p in range(np_):
        e("  ds_write_b16 v%d, v%d offset:%d" % (H[js[2 * p]], nregs[p], PC))
        e("  ds_write_b16_d16_hi v%d, v%d offset:%d" % (H[js[2 * p + 1]], nregs[p], PC))

stamp(3)
e("  s_waitcnt vmcnt(4)")
place([0, 1, 2, 3], [24, 25])
e("  s_waitcnt vmcnt(2)")
place([4, 5, 6, 7], [26, 27])
e("  s_waitcnt vmcnt(0)")
if opts["pref"] == "1":
    e("  buffer_load_dwordx4 v[92:95], v1, s[44:47], s48 offen")
    e("  buffer_load_dwordx4 v[96:99], v1, s[44:47], s49 offen")
    e("  buffer_load_dwordx4 v[100:103], v1, s[44:47], s50 offen")
place([8, 9], [28])
e("  v_lshrrev_b32 v91, 6, v0")
e("  s_waitcnt lgkmcnt(0)")
e("  v_readfirstlane_b32 s34, v91")
e("  s_barrier")
stamp(4)
e("  ds_read_b128 v[4:7], v1 offset:%d" % PA)
e("  ds_read_b128 v[8:11], v1 offset:%d" % (PA + 16384))
e("  ds_read_b128 v[12:15], v1 offset:%d" % (PA + 32768))
e("  ds_read_b128 v[16:19], v1 offset:%d" % (PA + 49152))
e("  s_add_u32 s35, s20, %d" % WS_A)
e("  s_add_u32 s36, s21, %d" % WS_A)
e("  s_add_u32 s37, s22, %d" % WS_A)
e("  s_add_u32 s38, s23, %d" % (WS_C - 8192))
e("  s_cmp_lt_u32 s34, 8")
e("  s_cselect_b32 s37, s37, s38")
e("  s_add_u32 s38, s23, %d" % (WS_C + 8192))
e("  s_waitcnt lgkmcnt(3)")
e("  buffer_store_dwordx4 v[4:7], v1, s[16:19], s35 offen" + ST)
e("  s_waitcnt lgkmcnt(2)")
e("  buffer_store_dwordx4 v[8:11], v1, s[16:19], s36 offen" + ST)
e("  s_waitcnt lgkmcnt(1)")
e("  buffer_store_dwordx4 v[12:15], v1, s[16:19], s37 offen" + ST)
e("  s_waitcnt lgkmcnt(0)")
e("  s_cmp_ge_u32 s34, 12")
e("  s_cbranch_scc1 L_p1_fin")
e("  buffer_store_dwordx4 v[16:19], v1, s[16:19], s38 offen" + ST)
e("  s_cmp_ge_u32 s34, 4")
e("  s_cbranch_scc1 L_p1_fin")
e("  s_lshl_b32 s39, s34, 10")
e("  s_lshl_b32 s40, s2, 2")
e("  s_add_u32 s39, s39, s40")
e("  s_add_u32 s39, s39, %d" % WS_T)
e("  v_lshlrev_b32 v72, 12, v71")
e("  s_cmp_eq_u32 s34, 0")
e("  s_cbranch_scc1 L_p1_t0")
e("  s_cmp_eq_u32 s34, 1")
e("  s_cbranch_scc1 L_p1_t1")
e("  s_cmp_eq_u32 s34, 2")
e("  s_cbranch_scc1 L_p1_t2")
e("  buffer_store_dword v77, v72, s[16:19], s39 offen" + ST)
e("  s_branch L_p1_fin")
e("L_p1_t0:")
e("  buffer_store_dword v74, v72, s[16:19], s39 offen" + ST)
e("  s_branch L_p1_fin")
e("L_p1_t1:")
e("  buffer_store_dword v75, v72, s[16:19], s39 offen" + ST)
e("  s_branch L_p1_fin")
e("L_p1_t2:")
e("  buffer_store_dword v76, v72, s[16:19], s39 offen" + ST)
e("L_p1_fin:")
stamp(5)
if STAMP:
    e("  s_waitcnt vmcnt(0)")
stamp(6)
stamp_flush("s[16:19]", 0)
e("L_p1_end:")
e("  s_endpgm")

K2 = "gs_acc_kernel"
e(".globl %s" % K2)
e(".p2align 8")
e(".type %s,@function" % K2)
e("%s:" % K2)
e("  s_cmp_ge_u32 s2, %d" % NWG)
e("  s_cbranch_scc1 L_p2_end")
stamp(0)
e("  s_load_dwordx2 s[4:5], s[0:1], 0")
e("  s_load_dwordx2 s[8:9], s[0:1], 24")
e("  s_load_dwordx2 s[12:13], s[0:1], 104")
e("  s_load_dwordx2 s[16:17], s[0:1], 88")
e("  s_load_dwordx4 s[20:23], s[0:1], 56")
e("  s_load_dwordx4 s[24:27], s[0:1], 72")
e("  s_load_dwordx2 s[28:29], s[0:1], 40")
e("  v_and_b32 v1, 63, v0")
e("  v_lshrrev_b32 v6, 6, v0")
if opts["xcd"] == "1":
    e("  s_and_b32 s40, s2, 7")
    e("  s_lshr_b32 s41, s2, 3")
    e("  s_mul_i32 s42, s40, 31")
    e("  s_min_u32 s43, s40, 2")
    e("  s_add_u32 s3, s42, s43")
    e("  s_add_u32 s3, s3, s41")
else:
    e("  s_mov_b32 s3, s2")
e("  s_mov_b32 s6, 1280000")
e("  s_mov_b32 s7, 0x20000")
e("  s_mov_b32 s10, 320000")
e("  s_mov_b32 s11, 0x20000")
e("  s_mov_b32 s14, %d" % WS_SIZE)
e("  s_mov_b32 s15, 0x20000")
e("  s_mov_b32 s18, 1280000")
e("  s_mov_b32 s19, 0x20000")
e("  v_readfirstlane_b32 s30, v6")
e("  s_mul_i32 s31, s3, %d" % BINW)
e("  s_lshl_b32 s32, s3, 10")
e("  s_add_u32 s32, s32, %d" % WS_T)
e("  s_mov_b32 s33, %d" % WS_C)
e("  v_add_u32 v92, s31, v0")
e("  v_lshlrev_b32 v93, 1, v92")
e("  v_lshlrev_b32 v92, 3, v92")
e("  s_lshl_b32 s36, s30, 4")
e("  v_add_u32 v6, s36, v1")
e("  v_lshlrev_b32 v7, 2, v6")
e("  v_mov_b32 v8, 1")
e("  s_waitcnt lgkmcnt(0)")
e("  buffer_load_dword v2, v7, s[12:15], s32 offen")
e("  buffer_load_ushort v94, v93, s[8:11], 0 offen")
e("  buffer_load_dwordx2 v[96:97], v92, s[4:7], 0 offen")
e("  v_mov_b32 v44, 0")
e("  v_mov_b32 v45, 0")
e("  v_mov_b32 v46, 0")
e("  v_mov_b32 v47, 0")
e("  v_lshlrev_b32 v48, 4, v0")
DEDUPE = opts["dedupe"] == "1"
ZEND = (BUCKET + NSLOT * 8) if DEDUPE else (ACC + 4 * BINW * 8)
full, rem = divmod(ZEND // 16, 1024)
for r in range(full):
    if r and r % 4 == 0:
        e("  v_add_u32 v48, 0x10000, v48")
    e("  ds_write_b128 v48, v[44:47] offset:%d" % ((r % 4) * 16384))
if rem:
    if full % 4 == 0:
        e("  v_add_u32 v48, 0x10000, v48")
    e("  v_cmp_gt_u32 vcc, %d, v0" % rem)
    e("  s_and_saveexec_b64 s[34:35], vcc")
    e("  ds_write_b128 v48, v[44:47] offset:%d" % ((full % 4) * 16384))
    e("  s_mov_b64 exec, s[34:35]")
e("  s_waitcnt vmcnt(2)")
stamp(1)
e("  v_lshrrev_b32 v4, 16, v2")
e("  v_and_b32 v2, 0xffff, v2")
e("  s_mov_b32 s37, %d" % CH)
e("  v_mad_u32_u24 v2, v6, s37, v2")
e("  v_cmp_gt_u32 vcc, %d, v6" % NWG)
e("  v_cmp_gt_u32 s[38:39], 16, v1")
e("  s_and_b64 vcc, vcc, s[38:39]")
e("  v_cndmask_b32 v4, 0, v4, vcc")
e("  v_cndmask_b32 v2, 0, v2, vcc")
e("  v_min_u32 v5, 64, v4")
e("  v_cmp_lt_u32 vcc, 64, v4")
e("  s_mov_b32 s40, 0")
e("  s_mov_b32 s41, 0")
e("  s_cbranch_vccz L_p2_nolong")
e("  s_ff1_i32_b64 s42, vcc")
e("  v_readlane_b32 s40, v2, s42")
e("  v_readlane_b32 s41, v4, s42")
e("  s_add_u32 s40, s40, 64")
e("  s_sub_u32 s41, s41, 64")
e("  s_min_u32 s41, s41, 64")
e("  s_add_u32 s43, s41, 64")
e("  s_mov_b32 m0, s42")
e("  s_nop 0")
e("  v_writelane_b32 v5, s43, m0")
e("L_p2_nolong:")
e("  v_min_u32 v3, 64, v4")
e("  v_writelane_b32 v2, s40, 16")
e("  v_writelane_b32 v3, s41, 16")
e("  v_sub_u32 v3, 64, v3")
e("  v_mov_b32 v9, v2")
e("  s_waitcnt lgkmcnt(0)")
e("  s_barrier")
NP = 17
A = [10 + 2 * s for s in range(NP)]
C = [11 + 2 * s for s in range(NP)]
MK = [44 + 2 * s for s in range(NP)]
for s in range(NP):
    e("  v_readlane_b32 s34, v3, %d" % s)
    e("  v_readlane_b32 s35, v2, %d" % s)
    e("  s_lshr_b64 s[%d:%d], -1, s34" % (MK[s], MK[s] + 1))
    e("  s_cmp_eq_u32 s34, 64")
    e("  s_cselect_b64 s[%d:%d], 0, s[%d:%d]" % (MK[s], MK[s] + 1, MK[s], MK[s] + 1))
    e("  s_or_b64 exec, s[%d:%d], 1" % (MK[s], MK[s] + 1))
    ta, tc = (78, 79) if s % 2 == 0 else (80, 81)
    e("  v_add_lshl_u32 v%d, s35, v1, 2" % ta)
    e("  v_add_lshl_u32 v%d, s35, v1, 1" % tc)
    e("  buffer_load_dword v%d, v%d, s[12:15], 0 offen" % (A[s], ta))
    e("  buffer_load_ushort v%d, v%d, s[12:15], s33 offen" % (C[s], tc))
e("  s_mov_b64 exec, -1")
stamp(2)

ovf_blocks = []
G = [44 + 2 * r for r in range(17)]
if DEDUPE:
    batches = [[0, 1, 2, 3], [4, 5, 6, 7], [8, 9, 10, 11], [12, 13, 14, 15, 16]]
    for bt in batches:
        for p, s in enumerate(bt):
            vb, vr, vh = 44 + p, 50 + p, 56 + p
            e("  s_waitcnt vmcnt(%d)" % (2 * (NP - 1 - s)))
            e("  s_mov_b64 exec, s[%d:%d]" % (MK[s], MK[s] + 1))
            e("  v_bfe_u32 v%d, v%d, 11, 10" % (vb, A[s]))
            e("  v_lshlrev_b32 v%d, 2, v%d" % (vh, vb))
            e("  ds_add_rtn_u32 v%d, v%d, v8 offset:%d" % (vr, vh, CNT1))
            e("  v_mul_u32_u24 v%d, %d, v%d" % (vb, CAP * 8, vb))
            e("  v_lshl_or_b32 v%d, v%d, 16, 1" % (C[s], C[s]))
        e("  s_waitcnt lgkmcnt(0)")
        for p, s in enumerate(bt):
            vb, vr, vh = 44 + p, 50 + p, 56 + p
            e("  s_mov_b64 exec, s[%d:%d]" % (MK[s], MK[s] + 1))
            e("  v_lshl_add_u32 v%d, v%d, 3, v%d" % (vb, vr, vb))
            e("  v_cmp_le_u32 vcc, %d, v%d" % (CAP, vr))
            e("  s_cbranch_vccnz L_p2_ovf%d" % s)
            e("L_p2_back%d:" % s)
            e("  ds_write_b64 v%d, v[%d:%d] offset:%d" % (vb, A[s], A[s] + 1, BUCKET))
            ovf_blocks.append((s, vb, vr, vh))
    e("  s_mov_b64 exec, -1")
    e("  s_waitcnt lgkmcnt(0)")
    stamp(3)
    e("  s_barrier")
    NR = 16
    e("  v_mov_b32 v6, 0")
    e("  v_lshlrev_b32 v7, 3, v0")
    e("  ds_read_b32 v6, v6 offset:%d" % (FLAGS + 4))
    e("  v_add_u32 v7, %d, v7" % BUCKET)
    e("  v_add_u32 v77, 0x10000, v7")
    for r in range(NR):
        base = 7 if r < 8 else 77
        e("  ds_read_b64 v[%d:%d], v%d offset:%d" % (A[r], A[r] + 1, base, (r % 8) * 8192))
    e("  s_waitcnt lgkmcnt(0)")
    e("  v_readfirstlane_b32 s34, v6")
    e("  s_cmp_lg_u32 s34, 0")
    e("  s_cbranch_scc1 L_p2_panic")
    SM = [44 + 2 * r for r in range(NR)]
    for r in range(NR):
        e("  v_cmp_ne_u32 s[%d:%d], 0, v%d" % (SM[r], SM[r] + 1, C[r]))
    for r in range(NR):
        e("  v_and_b32 v%d, 0x1fffff, v%d" % (G[r], A[r]))
    for r in range(NR):
        e("  s_or_b64 exec, s[%d:%d], 1" % (SM[r], SM[r] + 1))
        e("  buffer_load_dwordx2 v[%d:%d], v%d, s[4:7], 0 offen" % (G[r], G[r] + 1, G[r]))
    e("  s_mov_b64 exec, -1")
    NACC = NR
else:
    for s in range(NP):
        e("  s_waitcnt vmcnt(%d)" % (2 * NP - 2 - 2 * s + s + 1))
        e("  s_or_b64 exec, s[%d:%d], 1" % (MK[s], MK[s] + 1))
        ta = 78 + (s % 4)
        e("  v_and_b32 v%d, 0x1fffff, v%d" % (ta, A[s]))
        e("  buffer_load_dwordx2 v[%d:%d], v%d, s[4:7], 0 offen" % (G[s], G[s] + 1, ta))
    e("  s_mov_b64 exec, -1")
    stamp(3)
    SM = MK
    NACC = NP
stamp(4)
S = [98, 99, 100, 101]
Rr = [102, 103, 104, 105]
e("  s_cmp_ge_u32 s30, 10")
e("  s_cbranch_scc1 L_p2_nopre")
e("  s_load_dwordx4 s[96:99], s[28:29], 0")
e("  s_load_dwordx16 s[80:95], s[22:23], 0")
e("  v_lshlrev_b32 v94, 16, v94")
e("  s_mov_b32 s34, 0xc1200000")
e("  s_mov_b32 s35, 0x3fb8aa3b")
e("  s_waitcnt lgkmcnt(0)")
RB = [106 + n for n in range(8)]
for p in range(4):
    a, b = RB[2 * p], RB[2 * p + 1]
    e("  s_lshl_b32 s36, s%d, 16" % (96 + p))
    e("  s_and_b32 s37, s%d, 0xffff0000" % (96 + p))
    e("  v_subrev_f32 v%d, s36, v94" % a)
    e("  v_subrev_f32 v%d, s37, v94" % b)
    def rnd():
        e("  v_cvt_pk_bf16_f32 v78, v%d, v%d" % (a, b))
        e("  v_lshlrev_b32 v%d, 16, v78" % a)
        e("  v_and_b32 v%d, 0xffff0000, v78" % b)
    rnd()
    e("  v_mul_f32 v%d, v%d, v%d" % (a, a, a))
    e("  v_mul_f32 v%d, v%d, v%d" % (b, b, b))
    rnd()
    e("  v_mul_f32 v%d, s34, v%d" % (a, a))
    e("  v_mul_f32 v%d, s34, v%d" % (b, b))
    rnd()
    e("  v_mul_f32 v%d, s35, v%d" % (a, a))
    e("  v_mul_f32 v%d, s35, v%d" % (b, b))
    e("  v_exp_f32 v%d, v%d" % (a, a))
    e("  v_exp_f32 v%d, v%d" % (b, b))
    e("  s_nop 0")
    rnd()
def matvec(dst, src, wbase, nrows):
    for n in range(nrows):
        for k in range(4):
            dw = wbase + 2 * n + (k >> 1)
            tmp = 40 + (k & 3)
            if k & 1:
                e("  s_and_b32 s%d, s%d, 0xffff0000" % (tmp, dw))
            else:
                e("  s_lshl_b32 s%d, s%d, 16" % (tmp, dw))
        for k in range(4):
            tmp = 40 + (k & 3)
            if n == 0:
                e("  v_mul_f32 v%d, s%d, v%d" % (dst[k], tmp, src[n]))
            else:
                e("  v_fmac_f32 v%d, s%d, v%d" % (dst[k], tmp, src[n]))
matvec(S, RB, 80, 8)
e("  s_load_dwordx16 s[80:95], s[20:21], 0")
e("  s_waitcnt lgkmcnt(0)")
matvec(Rr, RB, 80, 8)
e("L_p2_nopre:")
stamp(5)

def accumulate(a, c, g, cshift):
    e("  v_lshlrev_b32 v78, 16, v%d" % g)
    e("  v_and_b32 v80, 0xffff0000, v%d" % g)
    e("  v_lshlrev_b32 v82, 16, v%d" % (g + 1))
    e("  v_and_b32 v84, 0xffff0000, v%d" % (g + 1))
    if cshift:
        e("  v_lshlrev_b32 v86, 16, v%d" % c)
    else:
        e("  v_and_b32 v86, 0xffff0000, v%d" % c)
    e("  v_lshrrev_b32 v87, 18, v%d" % a)
    e("  v_mul_f32 v78, v86, v78")
    e("  v_mul_f32 v80, v86, v80")
    e("  v_mul_f32 v82, v86, v82")
    e("  v_mul_f32 v84, v86, v84")
    e("  v_and_b32 v87, 0x1ff8, v87")
    e("  v_cvt_f64_f32 v[78:79], v78")
    e("  v_cvt_f64_f32 v[80:81], v80")
    e("  v_cvt_f64_f32 v[82:83], v82")
    e("  v_cvt_f64_f32 v[84:85], v84")
    e("  ds_add_f64 v87, v[78:79] offset:%d" % ACC)
    e("  ds_add_f64 v87, v[80:81] offset:%d" % (ACC + BINW * 8))
    e("  ds_add_f64 v87, v[82:83] offset:%d" % (ACC + BINW * 16))
    e("  ds_add_f64 v87, v[84:85] offset:%d" % (ACC + BINW * 24))

for r in range(NACC):
    e("  s_waitcnt vmcnt(%d)" % (NACC - 1 - r))
    e("  s_mov_b64 exec, s[%d:%d]" % (SM[r], SM[r] + 1))
    e("  s_cbranch_execz L_p2_skip%d" % r)
    accumulate(A[r], C[r], G[r], not DEDUPE)
    e("L_p2_skip%d:" % r)
e("  s_mov_b64 exec, -1")
e("L_p2_left:")
e("  v_cmp_gt_u32 vcc, v4, v5")
e("  s_cbranch_vccz L_p2_leftdone")
e("  s_ff1_i32_b64 s42, vcc")
e("  v_readlane_b32 s40, v9, s42")
e("  v_readlane_b32 s41, v4, s42")
e("  v_readlane_b32 s43, v5, s42")
e("  s_add_u32 s40, s40, s43")
e("  s_sub_u32 s41, s41, s43")
e("  s_min_u32 s41, s41, 64")
e("  s_add_u32 s43, s43, s41")
e("  s_mov_b32 m0, s42")
e("  s_nop 0")
e("  v_writelane_b32 v5, s43, m0")
e("  s_sub_u32 s41, 64, s41")
e("  s_lshr_b64 exec, -1, s41")
e("  v_add_lshl_u32 v78, s40, v1, 2")
e("  v_add_lshl_u32 v79, s40, v1, 1")
e("  buffer_load_dword v10, v78, s[12:15], 0 offen")
e("  buffer_load_ushort v11, v79, s[12:15], s33 offen")
e("  s_waitcnt vmcnt(0)")
e("  v_and_b32 v78, 0x1fffff, v10")
e("  buffer_load_dwordx2 v[44:45], v78, s[4:7], 0 offen")
e("  s_waitcnt vmcnt(0)")
accumulate(10, 11, 44, True)
e("  s_mov_b64 exec, -1")
e("  s_branch L_p2_left")
e("L_p2_leftdone:")
e("  s_waitcnt lgkmcnt(0)")
stamp(6)
e("  s_barrier")
e("  s_cmp_ge_u32 s30, 10")
e("  s_cbranch_scc1 L_p2_fin")
e("  v_lshlrev_b32 v7, 3, v0")
e("  s_load_dwordx8 s[44:51], s[24:25], 0")
e("  s_load_dwordx8 s[52:59], s[26:27], 0")
e("  ds_read_b64 v[10:11], v7 offset:%d" % ACC)
e("  ds_read_b64 v[12:13], v7 offset:%d" % (ACC + BINW * 8))
e("  ds_read_b64 v[14:15], v7 offset:%d" % (ACC + BINW * 16))
e("  ds_read_b64 v[16:17], v7 offset:%d" % (ACC + BINW * 24))
e("  s_waitcnt lgkmcnt(0)")
e("  v_cvt_f32_f64 v20, v[10:11]")
e("  v_cvt_f32_f64 v21, v[12:13]")
e("  v_cvt_f32_f64 v22, v[14:15]")
e("  v_cvt_f32_f64 v23, v[16:17]")
matvec([24, 25, 26, 27], [20, 21, 22, 23], 44, 4)
for k in range(4):
    e("  v_mul_f32 v%d, v%d, v%d" % (24 + k, 24 + k, S[k]))
matvec([28, 29, 30, 31], [24, 25, 26, 27], 52, 4)
e("  v_lshlrev_b32 v32, 16, v96")
e("  v_and_b32 v33, 0xffff0000, v96")
e("  v_lshlrev_b32 v34, 16, v97")
e("  v_and_b32 v35, 0xffff0000, v97")
for k in range(4):
    e("  v_fmac_f32 v%d, v%d, v%d" % (32 + k, 28 + k, Rr[k]))
e("  v_cvt_pk_bf16_f32 v36, v32, v33")
e("  v_cvt_pk_bf16_f32 v37, v34, v35")
e("  buffer_store_dwordx2 v[36:37], v92, s[16:19], 0 offen")
e("L_p2_fin:")
if STAMP:
    e("  s_waitcnt vmcnt(0)")
    stamp(7)
    stamp_flush("s[12:15]", 1)
e("  s_endpgm")
if DEDUPE:
    e("L_p2_panic:")
    e("  v_mov_b32 v5, 0")
    e("  s_cmp_ge_u32 s30, 10")
    e("  s_cbranch_scc1 L_p2_left")
    for r in range(16):
        e("  s_mov_b64 s[%d:%d], 0" % (44 + 2 * r, 45 + 2 * r))
    e("  s_branch L_p2_pre")
    for (s, vb, vr, vh) in ovf_blocks:
        e("L_p2_ovf%d:" % s)
        e("  s_and_saveexec_b64 s[38:39], vcc")
        e("  v_mov_b32 v%d, 0" % vh)
        e("  ds_add_rtn_u32 v%d, v%d, v8 offset:%d" % (vr, vh, FLAGS))
        e("  s_waitcnt lgkmcnt(0)")
        e("  v_lshlrev_b32 v%d, 3, v%d" % (vb, vr))
        e("  v_add_u32 v%d, %d, v%d" % (vb, SPILL0 * 8, vb))
        e("  v_cmp_le_u32 vcc, %d, v%d" % (SPILLN, vr))
        e("  s_cbranch_vccz L_p2_ovfok%d" % s)
        e("  s_and_b64 exec, exec, vcc")
        e("  v_mov_b32 v%d, %d" % (vb, NSLOT * 8))
        e("  ds_write_b32 v%d, v8 offset:%d" % (vh, FLAGS + 4))
        e("L_p2_ovfok%d:" % s)
        e("  s_mov_b64 exec, s[38:39]")
        e("  s_branch L_p2_back%d" % s)
e("L_p2_end:")
e("  s_endpgm")

e('.section .rodata,"a"')
for k, nv in ((K1, 124 if STAMP else 104), (K2, 124 if STAMP else 114)):
    e(".p2align 6")
    e(".amdhsa_kernel %s" % k)
    e("  .amdhsa_next_free_vgpr %d" % nv)
    e("  .amdhsa_next_free_sgpr 102")
    e("  .amdhsa_accum_offset %d" % ((nv + 3) // 4 * 4))
    e("  .amdhsa_group_segment_fixed_size 0")
    e("  .amdhsa_kernarg_size 112")
    e("  .amdhsa_user_sgpr_count 2")
    e("  .amdhsa_user_sgpr_kernarg_segment_ptr 1")
    e("  .amdhsa_system_sgpr_workgroup_id_x 1")
    e("  .amdhsa_float_denorm_mode_32 3")
    e(".end_amdhsa_kernel")

text = "\n".join(out) + "\n"
text = text.replace("  s_load_dwordx4 s[96:99], s[28:29], 0", "L_p2_pre:\n  s_load_dwordx4 s[96:99], s[28:29], 0")
open(sys.argv[1], "w").write(text)
```

```python
import sys

NAME = "gather_scatter__molecular_angular_gemnet__graph"
NWG = 250
CH = 10240
BINW = 640
WS_A = 0
WS_C = NWG * CH * 4
WS_T = WS_C + NWG * CH * 2
WS_SIZE = 268435456

out = []
def e(s=""):
    out.append(s)

opts = dict(st="sc1", ldnt="nt", stamp="0", pref="0", cap="26", cap2="25", splitw="1", early="4", red="pk")
for a in sys.argv[2:]:
    k, v = a.split("=")
    opts[k] = v
ST = "" if opts["st"] == "plain" else " " + opts["st"].replace("+", " ")
LDNT = "" if opts["ldnt"] == "plain" else " " + opts["ldnt"]
STAMP = opts["stamp"] == "1"
STAMP_OFF = 0x4000000

def stamp(k):
    if not STAMP:
        return
    e("  s_memrealtime s[100:101]")
    e("  s_waitcnt lgkmcnt(0)")
    e("  v_writelane_b32 v124, s100, %d" % (2 * k))
    e("  v_writelane_b32 v124, s101, %d" % (2 * k + 1))

def stamp_flush(srd, launch):
    if not STAMP:
        return
    e("  s_mov_b64 exec, -1")
    e("  v_and_b32 v125, 63, v0")
    e("  v_lshlrev_b32 v125, 2, v125")
    e("  v_lshrrev_b32 v126, 6, v0")
    e("  v_lshlrev_b32 v126, 7, v126")
    e("  v_add_u32 v125, v125, v126")
    e("  s_lshl_b32 s100, s2, 11")
    e("  s_add_u32 s100, s100, %d" % (STAMP_OFF + launch * 256 * 2048))
    e("  s_mov_b64 exec, 0xffffffff")
    e("  buffer_store_dword v124, v125, %s, s100 offen" % srd)

header = open("cdna_kernels/%s.s.ref" % NAME).read().split("\n")
for line in header:
    if line.startswith("; Override launch") or line.startswith("; grid=ceil") or "@launch" in line:
        continue
    if line.startswith(";"):
        e(line)
    else:
        break

CAP = int(opts["cap"])
CAP2 = int(opts["cap2"])
NGRP = 625
NSLOT = 16384
ACC = 0
CNT1 = ACC + 4 * BINW * 8
CNT2 = CNT1 + 2560
FLAGS = CNT2 + 2560
BUCKET = FLAGS + 64
SPILL0 = NGRP * CAP
SPILLN = NSLOT - SPILL0
assert SPILLN > 0 and CAP2 * BINW <= NSLOT
P2_LDS = BUCKET + NSLOT * 8 + 16
P1_LDS = 2048 + CH * 4 + CH * 2
e("; Two launches: bin the triplets by destination range, then accumulate per range.")
e("; @launch kernel=%s_kernel grid=(%d,1,1) block=(1024,1,1) lds=%d" % (NAME, NWG, P1_LDS))
e("; @launch kernel=gs_acc_kernel grid=(%d,1,1) block=(1024,1,1) lds=%d" % (NWG, P2_LDS))
e('.amdgcn_target "amdgcn-amd-amdhsa--gfx950"')
e(".text")

CNT, OFF, PA = 0, 1024, 2048
PC = PA + CH * 4
K1 = NAME + "_kernel"
e(".globl %s" % K1)
e(".p2align 8")
e(".type %s,@function" % K1)
e("%s:" % K1)
e("  s_cmp_ge_u32 s2, %d" % NWG)
e("  s_cbranch_scc1 L_p1_end")
stamp(0)
e("  s_load_dwordx2 s[4:5], s[0:1], 8")
e("  s_load_dwordx2 s[8:9], s[0:1], 16")
e("  s_load_dwordx2 s[12:13], s[0:1], 32")
e("  s_load_dwordx2 s[30:31], s[0:1], 48")
e("  s_load_dwordx2 s[16:17], s[0:1], 104")
e("  s_load_dwordx2 s[44:45], s[0:1], 0")
e("  v_lshlrev_b32 v1, 4, v0")
e("  v_lshlrev_b32 v2, 3, v0")
e("  v_lshlrev_b32 v3, 2, v0")
e("  v_mov_b32 v90, 1")
e("  v_mov_b32 v70, 0")
e("  s_mul_i32 s20, s2, %d" % (CH * 4))
e("  s_add_u32 s21, s20, 16384")
e("  s_add_u32 s22, s20, 32768")
e("  s_mul_i32 s23, s2, %d" % (CH * 2))
e("  s_add_u32 s24, s23, 8192")
e("  s_add_u32 s25, s23, 16384")
e("  s_mov_b32 s6, %d" % (NWG * CH * 4))
e("  s_mov_b32 s7, 0x20000")
e("  s_mov_b32 s10, %d" % (NWG * CH * 4))
e("  s_mov_b32 s11, 0x20000")
e("  s_mov_b32 s14, %d" % (NWG * CH * 2))
e("  s_mov_b32 s15, 0x20000")
e("  s_mov_b32 s18, %d" % WS_SIZE)
e("  s_mov_b32 s19, 0x20000")
e("  s_mov_b32 s46, 1280000")
e("  s_mov_b32 s47, 0x20000")
e("  s_mov_b32 s27, %d" % (-BINW & 0xFFFFFFFF))
e("  s_mov_b32 s28, 0x3e22f900")
e("  s_mov_b32 s29, 0x36036e4e")
e("  s_lshr_b32 s48, s2, 3")
e("  s_mul_i32 s48, s48, 41472")
e("  s_add_u32 s49, s48, 16384")
e("  s_add_u32 s50, s48, 32768")
e("  v_cmp_gt_u32 vcc, 0x100, v0")
e("  s_and_saveexec_b64 s[32:33], vcc")
e("  ds_write_b32 v3, v70 offset:%d" % CNT)
e("  s_mov_b64 exec, s[32:33]")
e("  v_lshrrev_b32 v91, 6, v0")
e("  s_waitcnt lgkmcnt(0)")
O = [4 + j for j in range(10)]
I = [14 + j for j in range(10)]
N = [24 + j for j in range(5)]
H = [30 + j for j in range(10)]
D = [40 + j for j in range(10)]
R = [50 + j for j in range(10)]
F = [60 + j for j in range(10)]
e("  buffer_load_dwordx4 v[4:7], v1, s[8:11], s20 offen" + LDNT)
e("  buffer_load_dwordx4 v[8:11], v1, s[8:11], s21 offen" + LDNT)
e("  buffer_load_dwordx2 v[12:13], v2, s[8:11], s22 offen" + LDNT)
e("  v_readfirstlane_b32 s34, v91")
e("  s_load_dword s26, s[30:31], 0")
e("  s_barrier")
e("  buffer_load_dwordx4 v[14:17], v1, s[4:7], s20 offen" + LDNT)
e("  buffer_load_dwordx4 v[18:21], v1, s[4:7], s21 offen" + LDNT)
e("  buffer_load_dwordx2 v[22:23], v2, s[4:7], s22 offen" + LDNT)
e("  buffer_load_dwordx2 v[24:25], v2, s[12:15], s23 offen" + LDNT)
e("  buffer_load_dwordx2 v[26:27], v2, s[12:15], s24 offen" + LDNT)
e("  buffer_load_dword v28, v3, s[12:15], s25 offen" + LDNT)
e("  s_waitcnt lgkmcnt(0)")
e("  s_lshl_b32 s26, s26, 16")
stamp(1)

def hist(js):
    for j in js:
        e("  v_lshrrev_b32 v%d, 7, v%d" % (F[j], O[j]))
    for j in js:
        e("  v_mul_u32_u24 v%d, 0xcccd, v%d" % (F[j], F[j]))
    for j in js:
        e("  v_lshrrev_b32 v%d, 18, v%d" % (F[j], F[j]))
    for j in js:
        e("  v_lshlrev_b32 v%d, 2, v%d" % (H[j], F[j]))
    for j in js:
        e("  ds_add_rtn_u32 v%d, v%d, v90 offset:%d" % (R[j], H[j], CNT))
    for j in js:
        e("  v_mad_i32_i24 v%d, v%d, s27, v%d" % (D[j], F[j], O[j]))

e("  s_waitcnt vmcnt(8)")
hist([0, 1, 2, 3])
e("  s_waitcnt vmcnt(7)")
hist([4, 5, 6, 7])
e("  s_waitcnt vmcnt(6)")
hist([8, 9])
e("  s_waitcnt lgkmcnt(0)")
e("  s_barrier")
stamp(2)
e("  v_and_b32 v71, 63, v0")
e("  v_lshlrev_b32 v72, 4, v71")
e("  ds_read_b128 v[74:77], v72 offset:%d" % CNT)
e("  s_waitcnt lgkmcnt(0)")
e("  v_add_u32 v79, v74, v75")
e("  v_add_u32 v80, v79, v76")
e("  v_add_u32 v81, v80, v77")
e("  v_mov_b32 v82, v81")
for sh in (1, 2, 4, 8):
    e("  s_nop 1")
    e("  v_add_u32_dpp v82, v82, v82 row_shr:%d row_mask:0xf bank_mask:0xf bound_ctrl:0" % sh)
e("  s_nop 1")
e("  v_add_u32_dpp v82, v82, v82 row_bcast:15 row_mask:0xa bank_mask:0xf")
e("  s_nop 1")
e("  v_add_u32_dpp v82, v82, v82 row_bcast:31 row_mask:0xc bank_mask:0xf")
e("  v_sub_u32 v84, v82, v81")
e("  v_add_u32 v85, v84, v74")
e("  v_add_u32 v86, v84, v79")
e("  v_add_u32 v87, v84, v80")
e("  ds_write_b128 v72, v[84:87] offset:%d" % OFF)
e("  s_waitcnt lgkmcnt(0)")
for j in range(10):
    e("  ds_read_b32 v%d, v%d offset:%d" % (F[j], H[j], OFF))
for k in range(4):
    e("  v_lshl_or_b32 v%d, v%d, 16, v%d" % (74 + k, 74 + k, 84 + k))
e("  s_waitcnt lgkmcnt(0)")
for j in range(10):
    e("  v_add_u32 v%d, v%d, v%d" % (R[j], R[j], F[j]))
stamp(3)

def place_a(js):
    for j in js:
        e("  v_lshlrev_b32 v%d, 3, v%d" % (I[j], I[j]))
    for j in js:
        e("  v_lshl_or_b32 v%d, v%d, 21, v%d" % (I[j], D[j], I[j]))
    for j in js:
        e("  v_lshlrev_b32 v%d, 2, v%d" % (H[j], R[j]))
    for j in js:
        e("  ds_write_b32 v%d, v%d offset:%d" % (H[j], I[j], PA))

def place_c(js, nregs):
    np_ = len(nregs)
    X0 = [F[js[2 * p]] for p in range(np_)]
    X1 = [F[js[2 * p + 1]] for p in range(np_)]
    Q0 = [D[js[2 * p]] for p in range(np_)]
    Q1 = [D[js[2 * p + 1]] for p in range(np_)]
    for p in range(np_):
        e("  v_lshlrev_b32 v%d, 16, v%d" % (X0[p], nregs[p]))
        e("  v_and_b32 v%d, 0xffff0000, v%d" % (X1[p], nregs[p]))
    for p in range(np_):
        e("  v_mul_f32 v%d, s26, v%d" % (X0[p], X0[p]))
        e("  v_mul_f32 v%d, s26, v%d" % (X1[p], X1[p]))
    for p in range(np_):
        e("  v_cvt_pk_bf16_f32 v%d, v%d, v%d" % (nregs[p], X0[p], X1[p]))
    for p in range(np_):
        e("  v_lshlrev_b32 v%d, 16, v%d" % (X0[p], nregs[p]))
        e("  v_and_b32 v%d, 0xffff0000, v%d" % (X1[p], nregs[p]))
    for p in range(np_):
        e("  v_mul_f32 v%d, s28, v%d" % (Q0[p], X0[p]))
        e("  v_mul_f32 v%d, s28, v%d" % (Q1[p], X1[p]))
    for p in range(np_):
        e("  v_fract_f32 v%d, v%d" % (Q0[p], Q0[p]))
        e("  v_fract_f32 v%d, v%d" % (Q1[p], Q1[p]))
    for p in range(np_):
        e("  v_fma_f32 v%d, v%d, s29, v%d" % (Q0[p], X0[p], Q0[p]))
        e("  v_fma_f32 v%d, v%d, s29, v%d" % (Q1[p], X1[p], Q1[p]))
    for p in range(np_):
        e("  v_cos_f32 v%d, v%d" % (Q0[p], Q0[p]))
        e("  v_cos_f32 v%d, v%d" % (Q1[p], Q1[p]))
    for j in js:
        e("  v_lshlrev_b32 v%d, 1, v%d" % (H[j], R[j]))
    for p in range(np_):
        e("  v_cvt_pk_bf16_f32 v%d, v%d, v%d" % (nregs[p], Q0[p], Q1[p]))
    for p in range(np_):
        e("  ds_write_b16 v%d, v%d offset:%d" % (H[js[2 * p]], nregs[p], PC))
        e("  ds_write_b16_d16_hi v%d, v%d offset:%d" % (H[js[2 * p + 1]], nregs[p], PC))

e("  s_waitcnt vmcnt(5)")
place_a([0, 1, 2, 3])
e("  s_waitcnt vmcnt(4)")
place_a([4, 5, 6, 7])
e("  s_waitcnt vmcnt(3)")
place_a([8, 9])
SPLIT = opts["splitw"] == "1"
def write_a():
    e("  ds_read_b128 v[4:7], v1 offset:%d" % PA)
    e("  ds_read_b128 v[8:11], v1 offset:%d" % (PA + 16384))
    e("  ds_read_b128 v[12:15], v1 offset:%d" % (PA + 32768))
    e("  s_add_u32 s35, s20, %d" % WS_A)
    e("  s_add_u32 s36, s21, %d" % WS_A)
    e("  s_add_u32 s37, s22, %d" % WS_A)
    e("  s_waitcnt lgkmcnt(2)")
    e("  buffer_store_dwordx4 v[4:7], v1, s[16:19], s35 offen" + ST)
    e("  s_waitcnt lgkmcnt(1)")
    e("  buffer_store_dwordx4 v[8:11], v1, s[16:19], s36 offen" + ST)
    e("  s_waitcnt lgkmcnt(0)")
    e("  s_cmp_ge_u32 s34, 8")
    e("  s_cbranch_scc1 L_p1_a2")
    e("  buffer_store_dwordx4 v[12:15], v1, s[16:19], s37 offen" + ST)
    e("L_p1_a2:")
def prefetch():
    if opts["pref"] == "1":
        e("  buffer_load_dwordx4 v[92:95], v1, s[44:47], s48 offen")
        e("  buffer_load_dwordx4 v[96:99], v1, s[44:47], s49 offen")
        e("  buffer_load_dwordx4 v[100:103], v1, s[44:47], s50 offen")
if SPLIT:
    e("  s_waitcnt lgkmcnt(0)")
    e("  s_barrier")
    stamp(4)
    e("  s_waitcnt vmcnt(0)")
    write_a()
    prefetch()
else:
    e("  s_waitcnt vmcnt(0)")
    prefetch()
place_c([0, 1, 2, 3], [24, 25])
place_c([4, 5, 6, 7], [26, 27])
place_c([8, 9], [28])
e("  s_waitcnt lgkmcnt(0)")
e("  s_barrier")
stamp(5)
if not SPLIT:
    write_a()
e("  ds_read_b128 v[16:19], v1 offset:%d" % PC)
e("  ds_read_b128 v[20:23], v1 offset:%d" % (PC + 16384))
e("  s_add_u32 s38, s23, %d" % WS_C)
e("  s_add_u32 s39, s23, %d" % (WS_C + 16384))
e("  s_waitcnt lgkmcnt(1)")
e("  buffer_store_dwordx4 v[16:19], v1, s[16:19], s38 offen" + ST)
e("  s_cmp_ge_u32 s34, 4")
e("  s_cbranch_scc1 L_p1_fin")
e("  s_waitcnt lgkmcnt(0)")
e("  buffer_store_dwordx4 v[20:23], v1, s[16:19], s39 offen" + ST)
e("  s_lshl_b32 s39, s34, 10")
e("  s_lshl_b32 s40, s2, 2")
e("  s_add_u32 s39, s39, s40")
e("  s_add_u32 s39, s39, %d" % WS_T)
e("  v_lshlrev_b32 v72, 12, v71")
e("  s_cmp_eq_u32 s34, 0")
e("  s_cbranch_scc1 L_p1_t0")
e("  s_cmp_eq_u32 s34, 1")
e("  s_cbranch_scc1 L_p1_t1")
e("  s_cmp_eq_u32 s34, 2")
e("  s_cbranch_scc1 L_p1_t2")
e("  buffer_store_dword v77, v72, s[16:19], s39 offen" + ST)
e("  s_branch L_p1_fin")
e("L_p1_t0:")
e("  buffer_store_dword v74, v72, s[16:19], s39 offen" + ST)
e("  s_branch L_p1_fin")
e("L_p1_t1:")
e("  buffer_store_dword v75, v72, s[16:19], s39 offen" + ST)
e("  s_branch L_p1_fin")
e("L_p1_t2:")
e("  buffer_store_dword v76, v72, s[16:19], s39 offen" + ST)
e("L_p1_fin:")
stamp(6)
if STAMP:
    e("  s_waitcnt vmcnt(0)")
stamp(7)
stamp_flush("s[16:19]", 0)
e("L_p1_end:")
e("  s_endpgm")

K2 = "gs_acc_kernel"
EARLY = int(opts["early"])
e(".globl %s" % K2)
e(".p2align 8")
e(".type %s,@function" % K2)
e("%s:" % K2)
e("  s_cmp_ge_u32 s2, %d" % NWG)
e("  s_cbranch_scc1 L_p2_end")
stamp(0)
e("  s_load_dwordx2 s[4:5], s[0:1], 0")
e("  s_load_dwordx2 s[8:9], s[0:1], 24")
e("  s_load_dwordx2 s[12:13], s[0:1], 104")
e("  s_load_dwordx2 s[16:17], s[0:1], 88")
e("  s_load_dwordx4 s[20:23], s[0:1], 56")
e("  s_load_dwordx4 s[24:27], s[0:1], 72")
e("  s_load_dwordx2 s[28:29], s[0:1], 40")
e("  v_and_b32 v1, 63, v0")
e("  v_lshrrev_b32 v6, 6, v0")
e("  s_and_b32 s40, s2, 7")
e("  s_lshr_b32 s41, s2, 3")
e("  s_mul_i32 s42, s40, 31")
e("  s_min_u32 s43, s40, 2")
e("  s_add_u32 s3, s42, s43")
e("  s_add_u32 s3, s3, s41")
e("  s_mov_b32 s6, 1280000")
e("  s_mov_b32 s7, 0x20000")
e("  s_mov_b32 s10, 320000")
e("  s_mov_b32 s11, 0x20000")
e("  s_mov_b32 s14, %d" % WS_SIZE)
e("  s_mov_b32 s15, 0x20000")
e("  s_mov_b32 s18, 1280000")
e("  s_mov_b32 s19, 0x20000")
e("  v_readfirstlane_b32 s30, v6")
e("  s_mul_i32 s31, s3, %d" % BINW)
e("  s_lshl_b32 s32, s3, 10")
e("  s_add_u32 s32, s32, %d" % WS_T)
e("  s_mov_b32 s33, %d" % WS_C)
e("  v_add_u32 v92, s31, v0")
e("  v_lshlrev_b32 v93, 1, v92")
e("  v_lshlrev_b32 v92, 3, v92")
e("  s_lshl_b32 s36, s30, 4")
e("  v_add_u32 v6, s36, v1")
e("  v_lshlrev_b32 v7, 2, v6")
e("  v_mov_b32 v8, 1")
e("  s_waitcnt lgkmcnt(0)")
e("  buffer_load_dword v2, v7, s[12:15], s32 offen")
e("  buffer_load_ushort v94, v93, s[8:11], 0 offen")
e("  buffer_load_dwordx2 v[96:97], v92, s[4:7], 0 offen")
e("  v_mov_b32 v44, 0")
e("  v_mov_b32 v45, 0")
e("  v_mov_b32 v46, 0")
e("  v_mov_b32 v47, 0")
e("  v_lshlrev_b32 v48, 4, v0")
ZEND = BUCKET + NSLOT * 8
full, rem = divmod(ZEND // 16, 1024)
for r in range(full):
    if r and r % 4 == 0:
        e("  v_add_u32 v48, 0x10000, v48")
    e("  ds_write_b128 v48, v[44:47] offset:%d" % ((r % 4) * 16384))
if rem:
    if full % 4 == 0:
        e("  v_add_u32 v48, 0x10000, v48")
    e("  v_cmp_gt_u32 vcc, %d, v0" % rem)
    e("  s_and_saveexec_b64 s[34:35], vcc")
    e("  ds_write_b128 v48, v[44:47] offset:%d" % ((full % 4) * 16384))
    e("  s_mov_b64 exec, s[34:35]")
e("  s_waitcnt vmcnt(2)")
stamp(1)
e("  v_lshrrev_b32 v4, 16, v2")
e("  v_and_b32 v2, 0xffff, v2")
e("  s_mov_b32 s37, %d" % CH)
e("  v_mad_u32_u24 v2, v6, s37, v2")
e("  v_cmp_gt_u32 vcc, %d, v6" % NWG)
e("  v_cmp_gt_u32 s[38:39], 16, v1")
e("  s_and_b64 vcc, vcc, s[38:39]")
e("  v_cndmask_b32 v4, 0, v4, vcc")
e("  v_cndmask_b32 v2, 0, v2, vcc")
e("  v_min_u32 v5, 64, v4")
e("  v_cmp_lt_u32 vcc, 64, v4")
e("  s_mov_b32 s40, 0")
e("  s_mov_b32 s41, 0")
e("  s_cbranch_vccz L_p2_nolong")
e("  s_ff1_i32_b64 s42, vcc")
e("  v_readlane_b32 s40, v2, s42")
e("  v_readlane_b32 s41, v4, s42")
e("  s_add_u32 s40, s40, 64")
e("  s_sub_u32 s41, s41, 64")
e("  s_min_u32 s41, s41, 64")
e("  s_add_u32 s43, s41, 64")
e("  s_mov_b32 m0, s42")
e("  s_nop 0")
e("  v_writelane_b32 v5, s43, m0")
e("L_p2_nolong:")
e("  v_min_u32 v3, 64, v4")
e("  v_writelane_b32 v2, s40, 16")
e("  v_writelane_b32 v3, s41, 16")
e("  v_sub_u32 v3, 64, v3")
e("  v_mov_b32 v9, v2")
e("  s_waitcnt lgkmcnt(0)")
e("  s_barrier")
NP = 17
A = [10 + 2 * s for s in range(NP)]
C = [11 + 2 * s for s in range(NP)]
MK = [44 + 2 * s for s in range(NP)]
for s in range(NP):
    e("  v_readlane_b32 s34, v3, %d" % s)
    e("  v_readlane_b32 s35, v2, %d" % s)
    e("  s_lshr_b64 s[%d:%d], -1, s34" % (MK[s], MK[s] + 1))
    e("  s_cmp_eq_u32 s34, 64")
    e("  s_cselect_b64 s[%d:%d], 0, s[%d:%d]" % (MK[s], MK[s] + 1, MK[s], MK[s] + 1))
    e("  s_or_b64 exec, s[%d:%d], 1" % (MK[s], MK[s] + 1))
    ta, tc = (78, 79) if s % 2 == 0 else (80, 81)
    e("  v_add_lshl_u32 v%d, s35, v1, 2" % ta)
    e("  v_add_lshl_u32 v%d, s35, v1, 1" % tc)
    e("  buffer_load_dword v%d, v%d, s[12:15], 0 offen" % (A[s], ta))
    e("  buffer_load_ushort v%d, v%d, s[12:15], s33 offen" % (C[s], tc))
e("  s_mov_b64 exec, -1")
stamp(2)

ovf_blocks = []
G = [44 + 2 * r for r in range(16)]
batches = [[0, 1, 2, 3], [4, 5, 6, 7], [8, 9, 10, 11], [12, 13, 14, 15, 16]]
for bt in batches:
    for p, s in enumerate(bt):
        vb, vr, vh = 44 + p, 50 + p, 56 + p
        e("  s_waitcnt vmcnt(%d)" % (2 * (NP - 1 - s)))
        e("  s_mov_b64 exec, s[%d:%d]" % (MK[s], MK[s] + 1))
        e("  v_bfe_u32 v%d, v%d, 11, 10" % (vb, A[s]))
        e("  v_lshlrev_b32 v%d, 2, v%d" % (vh, vb))
        e("  ds_add_rtn_u32 v%d, v%d, v8 offset:%d" % (vr, vh, CNT1))
        e("  v_mul_u32_u24 v%d, %d, v%d" % (vb, CAP * 8, vb))
        e("  v_lshl_or_b32 v%d, v%d, 16, 1" % (C[s], C[s]))
    e("  s_waitcnt lgkmcnt(0)")
    for p, s in enumerate(bt):
        vb, vr, vh = 44 + p, 50 + p, 56 + p
        e("  s_mov_b64 exec, s[%d:%d]" % (MK[s], MK[s] + 1))
        e("  v_lshl_add_u32 v%d, v%d, 3, v%d" % (vb, vr, vb))
        e("  v_cmp_le_u32 vcc, %d, v%d" % (CAP, vr))
        e("  s_cbranch_vccnz L_p2_ovf%d" % s)
        e("L_p2_back%d:" % s)
        e("  ds_write_b64 v%d, v[%d:%d] offset:%d" % (vb, A[s], A[s] + 1, BUCKET))
        ovf_blocks.append((s, vb, vr, vh))
e("  s_mov_b64 exec, -1")
e("  s_waitcnt lgkmcnt(0)")
stamp(3)
e("  s_barrier")
NR = 16
e("  v_mov_b32 v6, 0")
e("  v_lshlrev_b32 v7, 3, v0")
e("  ds_read_b32 v6, v6 offset:%d" % (FLAGS + 4))
e("  v_add_u32 v7, %d, v7" % BUCKET)
e("  v_add_u32 v77, 0x10000, v7")
for r in range(NR):
    base = 7 if r < 8 else 77
    e("  ds_read_b64 v[%d:%d], v%d offset:%d" % (A[r], A[r] + 1, base, (r % 8) * 8192))
e("  s_waitcnt lgkmcnt(0)")
e("  v_readfirstlane_b32 s34, v6")
e("  s_cmp_lg_u32 s34, 0")
e("  s_cbranch_scc1 L_p2_panic")
e("  s_barrier")
SM = [44 + 2 * r for r in range(NR)]
for r in range(NR):
    e("  v_cmp_ne_u32 s[%d:%d], 0, v%d" % (SM[r], SM[r] + 1, C[r]))
for r in range(NR):
    e("  v_and_b32 v%d, 0x1fffff, v%d" % (G[r], A[r]))
e("  s_cmp_lt_u32 s30, %d" % EARLY)
e("  s_cbranch_scc1 L_p2_gath")
e("L_p2_side:")
e("  s_mov_b32 s36, %d" % (BINW * 8))
for b0 in range(0, NR, 4):
    for p in range(4):
        r = b0 + p
        vd, vh, vr = 78 + p, 82 + p, 86 + p
        e("  s_mov_b64 exec, s[%d:%d]" % (SM[r], SM[r] + 1))
        e("  v_lshrrev_b32 v%d, 18, v%d" % (vd, A[r]))
        e("  v_and_b32 v%d, 0x1ff8, v%d" % (vd, vd))
        e("  v_lshrrev_b32 v%d, 1, v%d" % (vh, vd))
        e("  ds_add_rtn_u32 v%d, v%d, v8 offset:%d" % (vr, vh, CNT2))
        e("  v_or_b32 v%d, 0x80000000, v%d" % (vh, vd))
    e("  s_waitcnt lgkmcnt(0)")
    for p in range(4):
        r = b0 + p
        vd, vh, vr = 78 + p, 82 + p, 86 + p
        e("  s_mov_b64 exec, s[%d:%d]" % (SM[r], SM[r] + 1))
        e("  v_cmp_le_u32 vcc, %d, v%d" % (CAP2, vr))
        e("  v_mad_u32_u24 v%d, v%d, s36, v%d" % (vd, vr, vd))
        e("  s_nop 0")
        e("  v_cndmask_b32 v%d, v%d, v%d, vcc" % (A[r], vd, vh))
e("  s_mov_b64 exec, -1")
stamp(4)
M = [98 + k for k in range(16)]
RB = [78 + n for n in range(8)]
S = [86, 87, 88, 89]
Rr = [114, 115, 116, 117]
e("  s_cmp_ge_u32 s30, 10")
e("  s_cbranch_scc1 L_p2_nopre")
e("L_p2_pre:")
e("  s_load_dwordx4 s[96:99], s[28:29], 0")
e("  s_load_dwordx16 s[80:95], s[22:23], 0")
e("  v_lshlrev_b32 v94, 16, v94")
e("  s_mov_b32 s34, 0xc1200000")
e("  s_mov_b32 s35, 0x3fb8aa3b")
e("  s_waitcnt lgkmcnt(0)")
for p in range(4):
    a, b = RB[2 * p], RB[2 * p + 1]
    e("  s_lshl_b32 s36, s%d, 16" % (96 + p))
    e("  s_and_b32 s37, s%d, 0xffff0000" % (96 + p))
    e("  v_subrev_f32 v%d, s36, v94" % a)
    e("  v_subrev_f32 v%d, s37, v94" % b)
    def rnd():
        e("  v_cvt_pk_bf16_f32 v95, v%d, v%d" % (a, b))
        e("  v_lshlrev_b32 v%d, 16, v95" % a)
        e("  v_and_b32 v%d, 0xffff0000, v95" % b)
    rnd()
    e("  v_mul_f32 v%d, v%d, v%d" % (a, a, a))
    e("  v_mul_f32 v%d, v%d, v%d" % (b, b, b))
    rnd()
    e("  v_mul_f32 v%d, s34, v%d" % (a, a))
    e("  v_mul_f32 v%d, s34, v%d" % (b, b))
    rnd()
    e("  v_mul_f32 v%d, s35, v%d" % (a, a))
    e("  v_mul_f32 v%d, s35, v%d" % (b, b))
    e("  v_exp_f32 v%d, v%d" % (a, a))
    e("  v_exp_f32 v%d, v%d" % (b, b))
    e("  s_nop 0")
    rnd()
def wunpack(tmp, wbase, n, k):
    dw = wbase + 2 * n + (k >> 1)
    if k & 1:
        e("  s_and_b32 s%d, s%d, 0xffff0000" % (tmp, dw))
    else:
        e("  s_lshl_b32 s%d, s%d, 16" % (tmp, dw))
def matvec(dst, src, wbase, nrows):
    for n in range(nrows):
        for k in range(4):
            wunpack(40 + k, wbase, n, k)
        for k in range(4):
            if n == 0:
                e("  v_mul_f32 v%d, s%d, v%d" % (dst[k], 40 + k, src[n]))
            else:
                e("  v_fmac_f32 v%d, s%d, v%d" % (dst[k], 40 + k, src[n]))
matvec(S, RB, 80, 8)
e("  s_load_dwordx16 s[80:95], s[20:21], 0")
e("  s_waitcnt lgkmcnt(0)")
matvec(Rr, RB, 80, 8)
e("  s_load_dwordx8 s[80:87], s[24:25], 0")
e("  s_load_dwordx8 s[88:95], s[26:27], 0")
e("  s_waitcnt lgkmcnt(0)")
T = [78, 79, 80, 81]
for k in range(4):
    for l in range(4):
        wunpack(40 + l, 88, l, k)
    for l in range(4):
        e("  v_mul_f32 v%d, s%d, v%d" % (T[l], 40 + l, S[l]))
    for l in range(4):
        e("  v_mul_f32 v%d, v%d, v%d" % (T[l], T[l], Rr[k]))
    for j in range(4):
        for l in range(4):
            wunpack(40 + l, 80, j, l)
        for l in range(4):
            if l == 0:
                e("  v_mul_f32 v%d, s%d, v%d" % (M[4 * j + k], 40 + l, T[l]))
            else:
                e("  v_fmac_f32 v%d, s%d, v%d" % (M[4 * j + k], 40 + l, T[l]))
e("L_p2_nopre:")
stamp(5)
e("  s_cmp_lt_u32 s30, %d" % EARLY)
e("  s_cbranch_scc1 L_p2_accum")
e("L_p2_gath:")
for r in range(NR):
    e("  s_or_b64 exec, s[%d:%d], 1" % (SM[r], SM[r] + 1))
    e("  buffer_load_dwordx2 v[%d:%d], v%d, s[4:7], 0 offen" % (G[r], G[r] + 1, G[r]))
e("  s_mov_b64 exec, -1")
e("  s_cmp_lt_u32 s30, %d" % EARLY)
e("  s_cbranch_scc1 L_p2_side")
e("L_p2_accum:")
stamp(6)

def accumulate(a, c, g):
    e("  v_lshlrev_b32 v78, 16, v%d" % g)
    e("  v_and_b32 v80, 0xffff0000, v%d" % g)
    e("  v_lshlrev_b32 v82, 16, v%d" % (g + 1))
    e("  v_and_b32 v84, 0xffff0000, v%d" % (g + 1))
    e("  v_lshlrev_b32 v86, 16, v%d" % c)
    e("  v_lshrrev_b32 v87, 18, v%d" % a)
    e("  v_mul_f32 v78, v86, v78")
    e("  v_mul_f32 v80, v86, v80")
    e("  v_mul_f32 v82, v86, v82")
    e("  v_mul_f32 v84, v86, v84")
    e("  v_and_b32 v87, 0x1ff8, v87")
    e("  v_cvt_f64_f32 v[78:79], v78")
    e("  v_cvt_f64_f32 v[80:81], v80")
    e("  v_cvt_f64_f32 v[82:83], v82")
    e("  v_cvt_f64_f32 v[84:85], v84")
    e("  ds_add_f64 v87, v[78:79] offset:%d" % ACC)
    e("  ds_add_f64 v87, v[80:81] offset:%d" % (ACC + BINW * 8))
    e("  ds_add_f64 v87, v[82:83] offset:%d" % (ACC + BINW * 16))
    e("  ds_add_f64 v87, v[84:85] offset:%d" % (ACC + BINW * 24))

ovf2_blocks = []
for r in range(NR):
    e("  s_waitcnt vmcnt(%d)" % (NR - 1 - r))
    e("  s_mov_b64 exec, s[%d:%d]" % (SM[r], SM[r] + 1))
    e("  s_cbranch_execz L_p2_skip%d" % r)
    g, c = G[r], C[r]
    pk = 88 + 2 * (r % 2)
    e("  v_lshlrev_b32 v78, 16, v%d" % g)
    e("  v_and_b32 v80, 0xffff0000, v%d" % g)
    e("  v_lshlrev_b32 v82, 16, v%d" % (g + 1))
    e("  v_and_b32 v84, 0xffff0000, v%d" % (g + 1))
    e("  v_and_b32 v86, 0xffff0000, v%d" % c)
    e("  v_cmp_gt_i32 vcc, 0, v%d" % A[r])
    e("  v_mul_f32 v78, v86, v78")
    e("  v_mul_f32 v80, v86, v80")
    e("  v_mul_f32 v82, v86, v82")
    e("  v_mul_f32 v84, v86, v84")
    e("  v_cvt_pk_bf16_f32 v%d, v78, v80" % pk)
    e("  v_cvt_pk_bf16_f32 v%d, v82, v84" % (pk + 1))
    e("  s_cbranch_vccnz L_p2_ovfb%d" % r)
    e("L_p2_backb%d:" % r)
    e("  ds_write_b64 v%d, v[%d:%d] offset:%d" % (A[r], pk, pk + 1, BUCKET))
    ovf2_blocks.append(r)
    e("L_p2_skip%d:" % r)
e("  s_mov_b64 exec, -1")
e("L_p2_left:")
e("  v_cmp_gt_u32 vcc, v4, v5")
e("  s_cbranch_vccz L_p2_leftdone")
e("  s_ff1_i32_b64 s42, vcc")
e("  v_readlane_b32 s40, v9, s42")
e("  v_readlane_b32 s41, v4, s42")
e("  v_readlane_b32 s43, v5, s42")
e("  s_add_u32 s40, s40, s43")
e("  s_sub_u32 s41, s41, s43")
e("  s_min_u32 s41, s41, 64")
e("  s_add_u32 s43, s43, s41")
e("  s_mov_b32 m0, s42")
e("  s_nop 0")
e("  v_writelane_b32 v5, s43, m0")
e("  s_sub_u32 s41, 64, s41")
e("  s_lshr_b64 exec, -1, s41")
e("  v_add_lshl_u32 v78, s40, v1, 2")
e("  v_add_lshl_u32 v79, s40, v1, 1")
e("  buffer_load_dword v10, v78, s[12:15], 0 offen")
e("  buffer_load_ushort v11, v79, s[12:15], s33 offen")
e("  s_waitcnt vmcnt(0)")
e("  v_and_b32 v78, 0x1fffff, v10")
e("  buffer_load_dwordx2 v[44:45], v78, s[4:7], 0 offen")
e("  s_waitcnt vmcnt(0)")
accumulate(10, 11, 44)
e("  s_mov_b64 exec, -1")
e("  s_branch L_p2_left")
e("L_p2_leftdone:")
e("  s_waitcnt lgkmcnt(0)")
stamp(7)
e("  s_barrier")
e("  s_cmp_ge_u32 s30, 10")
e("  s_cbranch_scc1 L_p2_fin")
e("  v_lshlrev_b32 v7, 3, v0")
e("  v_lshlrev_b32 v6, 2, v0")
e("  ds_read_b32 v6, v6 offset:%d" % CNT2)
e("  v_add_u32 v76, %d, v7" % BUCKET)
e("  v_add_u32 v77, %d, v7" % (BUCKET + 13 * BINW * 8))
for j in range(CAP2):
    base, jj = (76, j) if j < 13 else (77, j - 13)
    e("  ds_read_b64 v[%d:%d], v%d offset:%d" % (10 + 2 * j, 11 + 2 * j, base, jj * BINW * 8))
e("  ds_read_b64 v[62:63], v7 offset:%d" % ACC)
e("  ds_read_b64 v[64:65], v7 offset:%d" % (ACC + BINW * 8))
e("  ds_read_b64 v[66:67], v7 offset:%d" % (ACC + BINW * 16))
e("  ds_read_b64 v[68:69], v7 offset:%d" % (ACC + BINW * 24))
e("  v_mov_b32 v72, 0")
e("  v_mov_b32 v73, 0")
e("  v_mov_b32 v74, 0")
e("  v_mov_b32 v75, 0")
if opts["red"] == "dot":
    e("  s_mov_b32 s34, 0x00003f80")
    e("  s_mov_b32 s35, 0x3f800000")
NLAG = 12
for j in range(CAP2):
    left = (CAP2 - 1 - j) + 4
    if j == 0 or left < NLAG + 1:
        e("  s_waitcnt lgkmcnt(%d)" % min(left, NLAG))
    a = 10 + 2 * j
    t = 78 + 4 * (j % 2)
    e("  v_cmpx_lt_u32 vcc, %d, v6" % j)
    if opts["red"] == "dot":
        e("  v_dot2_f32_bf16 v72, v%d, s34, v72" % a)
        e("  v_dot2_f32_bf16 v73, v%d, s35, v73" % a)
        e("  v_dot2_f32_bf16 v74, v%d, s34, v74" % (a + 1))
        e("  v_dot2_f32_bf16 v75, v%d, s35, v75" % (a + 1))
    else:
        e("  v_lshlrev_b32 v%d, 16, v%d" % (t, a))
        e("  v_and_b32 v%d, 0xffff0000, v%d" % (t + 1, a))
        e("  v_lshlrev_b32 v%d, 16, v%d" % (t + 2, a + 1))
        e("  v_and_b32 v%d, 0xffff0000, v%d" % (t + 3, a + 1))
        e("  v_pk_add_f32 v[72:73], v[72:73], v[%d:%d]" % (t, t + 1))
        e("  v_pk_add_f32 v[74:75], v[74:75], v[%d:%d]" % (t + 2, t + 3))
e("  s_mov_b64 exec, -1")
e("  s_waitcnt lgkmcnt(0)")
e("  v_cvt_f32_f64 v20, v[62:63]")
e("  v_cvt_f32_f64 v21, v[64:65]")
e("  v_cvt_f32_f64 v22, v[66:67]")
e("  v_cvt_f32_f64 v23, v[68:69]")
e("  v_lshlrev_b32 v32, 16, v96")
e("  v_and_b32 v33, 0xffff0000, v96")
e("  v_lshlrev_b32 v34, 16, v97")
e("  v_and_b32 v35, 0xffff0000, v97")
for k in range(4):
    e("  v_add_f32 v%d, v%d, v%d" % (20 + k, 20 + k, 72 + k))
for j in range(4):
    for k in range(4):
        e("  v_fmac_f32 v%d, v%d, v%d" % (32 + k, 20 + j, M[4 * j + k]))
e("  v_cvt_pk_bf16_f32 v36, v32, v33")
e("  v_cvt_pk_bf16_f32 v37, v34, v35")
e("  buffer_store_dwordx2 v[36:37], v92, s[16:19], 0 offen")
e("L_p2_fin:")
if STAMP:
    e("  s_waitcnt vmcnt(0)")
    stamp(8)
    stamp_flush("s[12:15]", 1)
e("  s_endpgm")
e("L_p2_panic:")
e("  v_mov_b32 v5, 0")
for r in range(16):
    e("  v_mov_b32 v%d, 0" % G[r])
e("  s_cmp_ge_u32 s30, 10")
e("  s_cbranch_scc1 L_p2_left")
for r in range(16):
    e("  s_mov_b64 s[%d:%d], 0" % (44 + 2 * r, 45 + 2 * r))
e("  s_mov_b32 s30, 0")
e("  s_branch L_p2_pre")
for r in ovf2_blocks:
    e("L_p2_ovfb%d:" % r)
    e("  s_and_saveexec_b64 s[38:39], vcc")
    e("  v_and_b32 v87, 0x1ff8, v%d" % A[r])
    e("  v_cvt_f64_f32 v[78:79], v78")
    e("  v_cvt_f64_f32 v[80:81], v80")
    e("  v_cvt_f64_f32 v[82:83], v82")
    e("  v_cvt_f64_f32 v[84:85], v84")
    e("  ds_add_f64 v87, v[78:79] offset:%d" % ACC)
    e("  ds_add_f64 v87, v[80:81] offset:%d" % (ACC + BINW * 8))
    e("  ds_add_f64 v87, v[82:83] offset:%d" % (ACC + BINW * 16))
    e("  ds_add_f64 v87, v[84:85] offset:%d" % (ACC + BINW * 24))
    e("  s_andn2_b64 exec, s[38:39], vcc")
    e("  s_branch L_p2_backb%d" % r)
for (s, vb, vr, vh) in ovf_blocks:
    e("L_p2_ovf%d:" % s)
    e("  s_and_saveexec_b64 s[38:39], vcc")
    e("  v_mov_b32 v%d, 0" % vh)
    e("  ds_add_rtn_u32 v%d, v%d, v8 offset:%d" % (vr, vh, FLAGS))
    e("  s_waitcnt lgkmcnt(0)")
    e("  v_lshlrev_b32 v%d, 3, v%d" % (vb, vr))
    e("  v_add_u32 v%d, %d, v%d" % (vb, SPILL0 * 8, vb))
    e("  v_cmp_le_u32 vcc, %d, v%d" % (SPILLN, vr))
    e("  s_cbranch_vccz L_p2_ovfok%d" % s)
    e("  s_and_b64 exec, exec, vcc")
    e("  v_mov_b32 v%d, %d" % (vb, NSLOT * 8))
    e("  ds_write_b32 v%d, v8 offset:%d" % (vh, FLAGS + 4))
    e("L_p2_ovfok%d:" % s)
    e("  s_mov_b64 exec, s[38:39]")
    e("  s_branch L_p2_back%d" % s)
e("L_p2_end:")
e("  s_endpgm")

e('.section .rodata,"a"')
for k, nv in ((K1, 128 if STAMP else 104), (K2, 128 if STAMP else 118)):
    e(".p2align 6")
    e(".amdhsa_kernel %s" % k)
    e("  .amdhsa_next_free_vgpr %d" % nv)
    e("  .amdhsa_next_free_sgpr 102")
    e("  .amdhsa_accum_offset %d" % ((nv + 3) // 4 * 4))
    e("  .amdhsa_group_segment_fixed_size 0")
    e("  .amdhsa_kernarg_size 112")
    e("  .amdhsa_user_sgpr_count 2")
    e("  .amdhsa_user_sgpr_kernarg_segment_ptr 1")
    e("  .amdhsa_system_sgpr_workgroup_id_x 1")
    e("  .amdhsa_float_denorm_mode_32 3")
    e(".end_amdhsa_kernel")

open(sys.argv[1], "w").write("\n".join(out) + "\n")
```
